```python
import torch

def _softmax(x, axis=-1):
    return torch.softmax(x, dim=axis)
def _gelu(x):
    return torch.nn.functional.gelu(x, approximate="tanh")
def _silu(x):
    return torch.nn.functional.silu(x)
def _sigmoid(x):
    return torch.sigmoid(x)
def _layernorm(x, axis=-1, eps=1e-5):
    m = x.mean(dim=axis, keepdim=True)
    v = x.var(dim=axis, keepdim=True, unbiased=False)
    return (x - m) / torch.sqrt(v + eps)
def _scatter_add(tgt, idx, src, axis=0):
    return tgt.clone().index_add_(axis, idx, src)
def _segment_sum(src, seg, n):
    out = torch.zeros((n,) + src.shape[1:], dtype=src.dtype)
    return out.index_add_(0, seg, src)
def _pad(x, pw):
    flat = tuple(v for pair in reversed(pw) for v in pair)
    return torch.nn.functional.pad(x, flat)

kernel_name = 'standalone__gqa_block_cached__near_ridge'

def setup_inputs():

    _w = (lambda a: (lambda t: t.to(torch.bfloat16) if t.is_floating_point() else t)(torch.as_tensor(a)))
    B, Sq, D = 16, 64, 576
    Hq, Hkv, Sk, Dh = 32, 16, 1024, 128
    assert Hq % Hkv == 0, (Hq, Hkv)
    return {
        "x": _w((lambda *s: torch.randn(*s, dtype=torch.bfloat16) * 0.8)(B, Sq, D)),
        "k_cache": _w((lambda *s: torch.randn(*s, dtype=torch.bfloat16) * 0.8)(B, Hkv, Sk, Dh)),
        "v_cache": _w((lambda *s: torch.randn(*s, dtype=torch.bfloat16) * 0.05)(B, Hkv, Sk, Dh)),
        "wq": _w((lambda *s: torch.randn(*s, dtype=torch.bfloat16) * 0.8)(D, Hq * Dh) * (D ** -0.5)),
        "wo": _w((lambda *s: torch.randn(*s, dtype=torch.bfloat16) * 0.05)(Hq * Dh, D) * ((Hq * Dh) ** -0.5)),
    }

def reference(x, k_cache, v_cache, wq, wo):
    B, Sq, D = x.shape
    Hq, Dh = 32, 128
    Hkv = k_cache.shape[1]
    rep = Hq // Hkv
    q = (lambda x, *d: x.permute(*d))((x @ wq).reshape(B, Sq, Hq, Dh), 0, 2, 1, 3)
    k = (lambda x, n, axis: torch.repeat_interleave(x, n, dim=axis))(k_cache, rep, axis=1)
    v = (lambda x, n, axis: torch.repeat_interleave(x, n, dim=axis))(v_cache, rep, axis=1)
    scores = torch.einsum("bhqd,bhkd->bhqk", q, k) * (Dh ** -0.5)
    p = _softmax(scores, axis=-1)
    o = torch.einsum("bhqk,bhkd->bhqd", p, v)
    return (lambda x, *d: x.permute(*d))(o, 0, 2, 1, 3).reshape(B, Sq, Hq * Dh) @ wo
```

```python
import sys

L = []
def e(s): L.append("    " + s)
def lab(s): L.append(s + ":")
def cm(s): L.append("    ; " + s)

class VM:
    def __init__(self): self.q = []
    def issue(self, tag): self.q.append(tag)
    def wait(self, tags):
        last = -1
        for i, t in enumerate(self.q):
            if t in tags: last = i
        if last < 0: return
        n = len(self.q) - 1 - last
        assert n <= 63
        e(f"s_waitcnt vmcnt({n})")
        self.q = self.q[last+1:]
vm = VM()

vLANE = 1
vKA = 2
vVA = 10
vKD = 14
vVD = 15
vM = 16; vL = 17
vT0 = 18; vT1 = 19; vT2 = 20; vT3 = 21; vT4 = 22; vT5 = 23
vQ = 24
vO = 56
vS = 120
vP = 152
vKB = 168
vVB = 200
vX = 56
vWQD = 232
vWQA = 233
vWOD = 236
vWOA = 241
vQW = 242
vDUMP = 243
vST = 244
vH = 245
vR16 = 246
vACC = 56

sK, sV, sWQ, sX, sWO, sPT = 4, 8, 12, 16, 20, 24
sW = 28; sG = 29; sQI = 30; sW1024 = 31
sT0 = 32; sT1 = 33; sT2 = 34; sT3 = 35
sC = 36
sSLOT = 37
sDELTA = 38
sHEAD = 39; sQH = 40

SLOT = 32768
def slot_of(t): return (t + 3) % 5

def srd(s, base_lo, base_hi, nbytes):
    e(f"s_mov_b32 s{s}, s{base_lo}")
    e(f"s_and_b32 s{s+1}, s{base_hi}, 0xffff")
    e(f"s_mov_b32 s{s+2}, {nbytes}")
    e(f"s_mov_b32 s{s+3}, 0x00020000")

def dma(voff, srdreg, soff_expr, m0_const, tag):
    e(f"s_add_u32 m0, s{sW1024}, {m0_const}")
    e(f"s_mov_b32 s{sT3}, {soff_expr}")
    e(f"buffer_load_dwordx4 v{voff}, s[{srdreg}:{srdreg+3}], s{sT3} offen lds")
    vm.issue(tag)

def issue_tile(t):
    sl = slot_of(t) * SLOT
    for k in range(2):
        dma(vKD, sK, t*16384 + k*8192, sl + k*8192, ('kv', t))
    for k in range(2):
        dma(vVD, sV, t*16384 + k*8192, sl + 16384 + k*8192, ('kv', t))

def issue_wq(j):
    sl = (j % 3) * SLOT
    for k in range(4):
        dma(vWQD, sWQ, (j*64 + k*16)*8192, sl + k*8192, ('wq', j))

WOSLOT = [0, 36864, 73728, 110592]
def issue_wo(j):
    sl = WOSLOT[j % 4]
    for k in range(5):
        if k < 4:
            dma(vWOD + k, sWO, j*16*1152, sl + k*8192, ('wo', j))
        else:
            e(f"s_and_b32 s{sT2}, s{sW1024}, 0xfff")
            e(f"s_add_u32 m0, s{sT2}, {sl + 32768}")
            e(f"s_mov_b32 s{sT3}, {j*16*1152}")
            e(f"buffer_load_dwordx4 v{vWOD+4}, s[{sWO}:{sWO+3}], s{sT3} offen lds")
            vm.issue(('wo', j))

def gen_attn():
    lab("attn_kernel")
    e("s_cmp_ge_u32 s2, 256")
    e("s_cbranch_scc1 L_attn_done")
    e("s_load_dwordx4 s[40:43], s[0:1], 0")
    e("s_load_dwordx4 s[44:47], s[0:1], 16")
    e("s_load_dwordx2 s[48:49], s[0:1], 32")
    e("s_load_dwordx2 s[50:51], s[0:1], 56")
    e(f"v_and_b32 v{vLANE}, 63, v0")
    e(f"v_lshrrev_b32 v{vT0}, 6, v0")
    e("s_nop 0")
    e(f"v_readfirstlane_b32 s{sW}, v{vT0}")
    e("s_nop 3")
    e(f"s_lshr_b32 s{sG}, s{sW}, 2")
    e(f"s_and_b32 s{sQI}, s{sW}, 3")
    e(f"s_lshl_b32 s{sW1024}, s{sW}, 10")
    e(f"s_lshr_b32 s{sHEAD}, s{sQI}, 1")
    e("s_waitcnt lgkmcnt(0)")
    e(f"s_lshl_b32 s{sT0}, s2, 18")
    e(f"s_lshr_b32 s{sT1}, s2, 14")
    e(f"s_add_u32 s42, s42, s{sT0}")
    e(f"s_addc_u32 s43, s43, s{sT1}")
    e(f"s_add_u32 s44, s44, s{sT0}")
    e(f"s_addc_u32 s45, s45, s{sT1}")
    srd(sK, 42, 43, 262144)
    srd(sV, 44, 45, 262144)
    e(f"s_and_b32 s{sT0}, s2, 15")
    e(f"s_lshl_b32 s{sT1}, s{sT0}, 9")
    e(f"s_add_u32 s46, s46, s{sT1}")
    e(f"s_addc_u32 s47, s47, 0")
    srd(sWQ, 46, 47, 0)
    e(f"s_sub_u32 s{sWQ+2}, {576*8192}, s{sT1}")
    e(f"s_lshr_b32 s{sT1}, s2, 4")
    e(f"s_mul_i32 s{sT2}, s{sT1}, 73728")
    e(f"s_add_u32 s40, s40, s{sT2}")
    e(f"s_addc_u32 s41, s41, 0")
    srd(sX, 40, 41, 73728)
    e(f"s_mul_i32 s{sT2}, s{sT0}, {256*1152}")
    e(f"s_add_u32 s48, s48, s{sT2}")
    e(f"s_addc_u32 s49, s49, 0")
    srd(sWO, 48, 49, 256*1152)
    e(f"s_mul_i32 s{sT2}, s2, 147456")
    e(f"s_add_u32 s50, s50, s{sT2}")
    e(f"s_addc_u32 s51, s51, 0")
    srd(sPT, 50, 51, 147456)
    e(f"s_and_b32 s{sQH}, s{sQI}, 1")
    e(f"s_mov_b32 s{sC}, 0x3e0293ee")
    e(f"v_lshrrev_b32 v{vH}, 5, v{vLANE}")
    e(f"v_and_b32 v{vR16}, 31, v{vLANE}")
    e(f"s_lshl_b32 s{sT0}, s{sQH}, 5")
    e(f"v_add_u32 v{vT0}, s{sT0}, v{vR16}")
    e(f"s_movk_i32 s{sT1}, 1152")
    e(f"v_mul_lo_u32 v{vT0}, v{vT0}, s{sT1}")
    e(f"v_lshl_add_u32 v{vT0}, v{vH}, 4, v{vT0}")
    for ks in range(36):
        e(f"buffer_load_dwordx4 v[{vX+4*ks}:{vX+4*ks+3}], v{vT0}, s[{sX}:{sX+3}], 0 offen offset:{ks*32}")
        vm.issue(('x', ks))
    e(f"s_lshl_b32 s{sT0}, s{sW}, 1")
    e(f"v_add_u32 v{vT1}, s{sT0}, v{vH}")
    e(f"v_and_b32 v{vT2}, 3, v{vT1}")
    e(f"v_lshlrev_b32 v{vT2}, 2, v{vT2}")
    e(f"v_xor_b32 v{vT2}, v{vT2}, v{vR16}")
    e(f"v_lshlrev_b32 v{vT2}, 4, v{vT2}")
    e(f"v_lshl_add_u32 v{vWQD}, v{vT1}, 13, v{vT2}")
    issue_wq(0); issue_wq(1)
    e(f"v_lshrrev_b32 v{vT0}, 4, v{vLANE}")
    e(f"v_and_b32 v{vT1}, 15, v{vLANE}")
    e(f"s_lshl_b32 s{sT0}, s{sQI}, 2")
    e(f"v_add_u32 v{vT2}, s{sT0}, v{vT0}")
    e(f"v_xor_b32 v{vT2}, v{vT2}, v{vT1}")
    e(f"v_lshlrev_b32 v{vT2}, 4, v{vT2}")
    e(f"s_lshl_b32 s{sT0}, s{sW}, 2")
    e(f"v_add_u32 v{vT3}, s{sT0}, v{vT0}")
    e(f"v_lshl_add_u32 v{vKD}, v{vT3}, 8, v{vT2}")
    e(f"v_lshlrev_b32 v{vT2}, 2, v{vT0}")
    e(f"v_xor_b32 v{vT2}, v{vT2}, v{vT1}")
    e(f"v_lshlrev_b32 v{vT2}, 4, v{vT2}")
    e(f"v_lshl_add_u32 v{vVD}, v{vT3}, 8, v{vT2}")
    issue_tile(0); issue_tile(1)
    e(f"v_and_b32 v{vT0}, 15, v{vLANE}")
    for ks in range(8):
        e(f"v_or_b32 v{vT1}, {2*ks}, v{vH}")
        e(f"v_xor_b32 v{vT1}, v{vT1}, v{vT0}")
        e(f"v_lshlrev_b32 v{vT1}, 4, v{vT1}")
        e(f"v_lshl_add_u32 v{vKA+ks}, v{vR16}, 8, v{vT1}")
    e(f"v_bfe_u32 v{vT0}, v{vLANE}, 4, 1")
    e(f"v_bfe_u32 v{vT1}, v{vLANE}, 2, 2")
    e(f"v_and_b32 v{vT2}, 3, v{vLANE}")
    e(f"v_lshlrev_b32 v{vT3}, 5, v{vT0}")
    e(f"v_lshl_add_u32 v{vT3}, v{vT2}, 3, v{vT3}")
    e(f"v_lshl_add_u32 v{vT4}, v{vH}, 2, v{vT1}")
    e(f"v_lshl_add_u32 v{vT4}, v{vT4}, 8, v{vT3}")
    e(f"v_add_u32 v{vT4}, 16384, v{vT4}")
    for dt in range(4):
        e(f"v_xor_b32 v{vT5}, {dt}, v{vT1}")
        e(f"v_lshl_add_u32 v{vVA+dt}, v{vT5}, 6, v{vT4}")
    e(f"v_lshl_add_u32 v{vT4}, v{vH}, 3, v{vT1}")
    e(f"v_lshl_add_u32 v{vT4}, v{vT4}, 9, v{vT3}")
    e(f"s_lshl_b32 s{sT0}, s{sHEAD}, 2")
    e(f"s_lshl_b32 s{sT1}, s{sG}, 1")
    e(f"s_add_u32 s{sT0}, s{sT0}, s{sT1}")
    for dt in range(2):
        e(f"s_add_u32 s{sT1}, s{sT0}, {dt}")
        e(f"v_xor_b32 v{vT5}, s{sT1}, v{vT1}")
        e(f"v_lshl_add_u32 v{vWQA+dt}, v{vT5}, 6, v{vT4}")
    e(f"s_lshl_b32 s{sT0}, s{sHEAD}, 4")
    e(f"v_lshl_add_u32 v{vT4}, v{vH}, 2, v{vT1}")
    e(f"v_add_u32 v{vT4}, s{sT0}, v{vT4}")
    e(f"s_movk_i32 s{sT1}, 1152")
    e(f"v_mul_lo_u32 v{vT4}, v{vT4}, s{sT1}")
    e(f"s_mul_i32 s{sT0}, s{sG}, 576")
    e(f"v_add3_u32 v{vWOA}, v{vT4}, s{sT0}, v{vT3}")
    e(f"v_lshlrev_b32 v{vDUMP}, 4, v{vLANE}")
    for k in range(5):
        if k < 4:
            e(f"s_add_u32 s{sT0}, s{sW1024}, {k*8192}")
        else:
            e(f"s_and_b32 s{sT0}, s{sW1024}, 0xfff")
            e(f"s_add_u32 s{sT0}, s{sT0}, 32768")
        e(f"v_add_u32 v{vT0}, s{sT0}, v{vDUMP}")
        e(f"v_mov_b32 v{vT1}, 18432")
        e(f"v_cmp_ge_u32 vcc, v{vT0}, v{vT1}")
        e(f"v_mov_b32 v{vT2}, 129024")
        e("s_nop 1")
        e(f"v_cndmask_b32 v{vT2}, 0, v{vT2}, vcc")
        e(f"v_add_u32 v{vWOD+k}, v{vT0}, v{vT2}")
    e(f"s_lshl_b32 s{sT0}, s{sQI}, 13")
    e(f"s_add_u32 s{sT0}, s{sT0}, 65536")
    e(f"v_lshlrev_b32 v{vQW}, 8, v{vR16}")
    e(f"v_add_u32 v{vQW}, s{sT0}, v{vQW}")
    e(f"v_lshl_add_u32 v{vQW}, v{vH}, 3, v{vQW}")
    for j in range(9):
        vm.wait([('wq', j)] + [('x', 4*j+k) for k in range(4)])
        e("s_barrier")
        if j + 2 < 9: issue_wq(j + 2)
        base = (j % 3) * SLOT
        seq = [(ks, dt) for ks in range(4) for dt in range(2)]
        def rd(n):
            ks, dt = seq[n]
            b = vVB + 4*n
            off = base + ks*16*512
            return b, dt, off
        if base >= 65536:
            e(f"v_add_u32 v{vT0}, {base}, v{vWQA}")
            e(f"v_add_u32 v{vT1}, {base}, v{vWQA+1}")
            A = [vT0, vT1]; b0 = 0
        else:
            A = [vWQA, vWQA+1]; b0 = base
        for n in range(8):
            ks, dt = seq[n]
            b = vVB + 4*n
            e(f"ds_read_b64_tr_b16 v[{b}:{b+1}], v{A[dt]} offset:{b0 + ks*8192}")
            if n == 7: e("s_waitcnt lgkmcnt(8)")
            e(f"ds_read_b64_tr_b16 v[{b+2}:{b+3}], v{A[dt]} offset:{b0 + ks*8192 + 2048}")
        for n in range(8):
            ks, dt = seq[n]
            b = vVB + 4*n
            e(f"s_waitcnt lgkmcnt({min(15, 2*(7-n))})")
            x = vX + 4*(4*j + ks)
            c = "0" if (j == 0 and ks == 0) else f"v[{vQ+16*dt}:{vQ+16*dt+15}]"
            e(f"v_mfma_f32_32x32x16_bf16 v[{vQ+16*dt}:{vQ+16*dt+15}], v[{b}:{b+3}], v[{x}:{x+3}], {c}")
    e("s_barrier")
    issue_tile(2)
    e("s_nop 7"); e("s_nop 7")
    e(f"v_and_b32 v{vT0}, 15, v{vLANE}")
    for dt in range(2):
        for i4 in range(4):
            a = vQ + 16*dt + 4*i4
            e(f"v_cvt_pk_bf16_f32 v{vT2}, v{a}, v{a+1}")
            e(f"v_cvt_pk_bf16_f32 v{vT3}, v{a+2}, v{a+3}")
            e(f"s_lshl_b32 s{sT0}, s{sG}, 3")
            e(f"s_add_u32 s{sT0}, s{sT0}, {dt*4 + i4}")
            e(f"v_xor_b32 v{vT4}, s{sT0}, v{vT0}")
            e(f"v_lshl_add_u32 v{vT4}, v{vT4}, 4, v{vQW}")
            e(f"ds_write_b64 v{vT4}, v[{vT2}:{vT3}]")
    e("s_waitcnt lgkmcnt(0)")
    e("s_barrier")
    e(f"s_lshl_b32 s{sT0}, s{sQI}, 13")
    e(f"s_add_u32 s{sT0}, s{sT0}, 65536")
    for ks in range(8):
        e(f"v_add_u32 v{vT0}, s{sT0}, v{vKA+ks}")
        e(f"ds_read_b128 v[{vQ+4*ks}:{vQ+4*ks+3}], v{vT0}")
    e(f"v_mov_b32 v{vM}, 0xff7fffff")
    e(f"v_mov_b32 v{vL}, 0")
    for i in range(64): e(f"v_mov_b32 v{vO+i}, 0")
    e(f"s_mov_b32 s{sSLOT}, {slot_of(1)*SLOT}")
    e(f"s_cmp_eq_u32 s{sG}, 0")
    e(f"s_cselect_b32 s{sSLOT}, {slot_of(0)*SLOT}, s{sSLOT}")
    for r in list(range(vKA, vKA+8)) + list(range(vVA, vVA+4)):
        e(f"v_add_u32 v{r}, s{sSLOT}, v{r}")
    e("s_waitcnt lgkmcnt(0)")
    for it in range(8):
        cm(f"---- iteration {it} ----")
        vm.wait([('kv', 2*it), ('kv', 2*it+1)])
        e("s_barrier")
        for t in (2*it+3, 2*it+4):
            if t < 16: issue_tile(t)
        if it == 7:
            issue_wo(0)
        def kread(n):
            kvt, ks = divmod(n, 8)
            b = vKB + 4*(n % 8)
            e(f"ds_read_b128 v[{b}:{b+3}], v{vKA+ks} offset:{kvt*8192}")
        for n in range(8): kread(n)
        for n in range(16):
            kvt, ks = divmod(n, 8)
            b = vKB + 4*(n % 8)
            e(f"s_waitcnt lgkmcnt({min(7, 15-n)})")
            c = "0" if ks == 0 else f"v[{vS+16*kvt}:{vS+16*kvt+15}]"
            e(f"v_mfma_f32_32x32x16_bf16 v[{vS+16*kvt}:{vS+16*kvt+15}], v[{b}:{b+3}], v[{vQ+4*ks}:{vQ+4*ks+3}], {c}")
            if n + 8 < 16: kread(n + 8)
        pv = [(k4, dt) for k4 in range(4) for dt in range(4)]
        def vread(n):
            k4, dt = pv[n]
            b = vVB + 4*(n % 8)
            off = k4*16*256
            e(f"ds_read_b64_tr_b16 v[{b}:{b+1}], v{vVA+dt} offset:{off}")
            e(f"ds_read_b64_tr_b16 v[{b+2}:{b+3}], v{vVA+dt} offset:{off + 2048}")
        for n in range(6): vread(n)
        e("s_nop 7"); e("s_nop 3")
        e(f"v_max3_f32 v{vT0}, v{vS}, v{vS+1}, v{vS+2}")
        for i in range(3, 31, 2):
            e(f"v_max3_f32 v{vT0}, v{vT0}, v{vS+i}, v{vS+i+1}")
        e(f"v_max_f32 v{vT0}, v{vT0}, v{vS+31}")
        e(f"v_mov_b32 v{vT1}, v{vT0}")
        e("s_nop 1")
        e(f"v_permlane32_swap_b32 v{vT0}, v{vT1}")
        e(f"v_max_f32 v{vT0}, v{vT0}, v{vT1}")
        e(f"v_mul_f32 v{vT0}, s{sC}, v{vT0}")
        e(f"v_max_f32 v{vT0}, v{vT0}, v{vM}")
        e(f"v_sub_f32 v{vT1}, v{vM}, v{vT0}")
        e(f"v_exp_f32 v{vT1}, v{vT1}")
        e(f"v_mov_b32 v{vM}, v{vT0}")
        for i in range(32):
            e(f"v_fma_f32 v{vS+i}, v{vS+i}, s{sC}, -v{vT0}")
        for i in range(32):
            e(f"v_exp_f32 v{vS+i}, v{vS+i}")
        e(f"v_mul_f32 v{vL}, v{vL}, v{vT1}")
        for i in range(64):
            e(f"v_mul_f32 v{vO+i}, v{vO+i}, v{vT1}")
        for i in range(16):
            e(f"v_cvt_pk_bf16_f32 v{vP+i}, v{vS+2*i}, v{vS+2*i+1}")
        e(f"v_add_f32 v{vT2}, v{vS}, v{vS+1}")
        e(f"v_add_f32 v{vT3}, v{vS+2}, v{vS+3}")
        for i in range(4, 32, 2):
            e(f"v_add_f32 v{vT2}, v{vT2}, v{vS+i}")
            e(f"v_add_f32 v{vT3}, v{vT3}, v{vS+i+1}")
        e(f"v_add_f32 v{vL}, v{vL}, v{vT2}")
        e(f"v_add_f32 v{vL}, v{vL}, v{vT3}")
        for n in range(16):
            k4, dt = pv[n]
            b = vVB + 4*(n % 8)
            outstanding_after = 2*min(5, 15-n)
            e(f"s_waitcnt lgkmcnt({outstanding_after})")
            p = vP + 4*k4
            e(f"v_mfma_f32_32x32x16_bf16 v[{vO+16*dt}:{vO+16*dt+15}], v[{b}:{b+3}], v[{p}:{p+3}], v[{vO+16*dt}:{vO+16*dt+15}]")
            if n + 6 < 16: vread(n + 6)
        if it < 7:
            dA = (slot_of(2*it+2) - slot_of(2*it)) * SLOT
            dB = (slot_of(2*it+3) - slot_of(2*it+1)) * SLOT
            e(f"s_mov_b32 s{sDELTA}, {dB}")
            e(f"s_cmp_eq_u32 s{sG}, 0")
            e(f"s_cselect_b32 s{sDELTA}, {dA}, s{sDELTA}")
            for r in list(range(vKA, vKA+8)) + list(range(vVA, vVA+4)):
                e(f"v_add_u32 v{r}, s{sDELTA}, v{r}")
    e("s_nop 7"); e("s_nop 7")
    e(f"v_mov_b32 v{vT1}, v{vL}")
    e("s_nop 1")
    e(f"v_permlane32_swap_b32 v{vL}, v{vT1}")
    e(f"v_add_f32 v{vL}, v{vL}, v{vT1}")
    e("s_barrier")
    issue_wo(1)
    e(f"s_lshl_b32 s{sT0}, s{sQI}, 14")
    e(f"s_add_u32 s{sT0}, s{sT0}, 73728")
    e(f"v_add_u32 v{vT4}, s{sT0}, v{vDUMP}")
    e(f"s_lshl_b32 s{sT1}, s{sQI}, 9")
    e(f"s_add_u32 s{sT1}, s{sT1}, 147456")
    e(f"v_lshl_add_u32 v{vT5}, v{vLANE}, 2, s{sT1}")
    e(f"s_cmp_eq_u32 s{sG}, 0")
    e("s_cbranch_scc1 L_mergeA")
    for i in range(16):
        e(f"ds_write_b128 v{vT4}, v[{vO+4*i}:{vO+4*i+3}] offset:{i*1024}")
    e(f"ds_write_b32 v{vT5}, v{vM}")
    e(f"ds_write_b32 v{vT5}, v{vL} offset:256")
    e("s_waitcnt lgkmcnt(0)")
    e("s_barrier")
    e("s_barrier")
    for i in range(8):
        e(f"ds_read_b128 v[{vQ+4*i}:{vQ+4*i+3}], v{vT4} offset:{i*1024}")
    e("s_waitcnt lgkmcnt(0)")
    e("s_branch L_mergeDone")
    lab("L_mergeA")
    e("s_barrier")
    e(f"ds_read_b32 v{vT0}, v{vT5}")
    e(f"ds_read_b32 v{vT1}, v{vT5} offset:256")
    for i in range(16):
        e(f"ds_read_b128 v[{vS+4*(i%8)}:{vS+4*(i%8)+3}], v{vT4} offset:{i*1024}") if i < 8 else None
    e("s_waitcnt lgkmcnt(8)")
    e(f"v_max_f32 v{vT2}, v{vM}, v{vT0}")
    e(f"v_sub_f32 v{vM}, v{vM}, v{vT2}")
    e(f"v_sub_f32 v{vT0}, v{vT0}, v{vT2}")
    e(f"v_exp_f32 v{vM}, v{vM}")
    e(f"v_exp_f32 v{vT0}, v{vT0}")
    e("s_nop 0")
    e(f"v_mul_f32 v{vL}, v{vL}, v{vM}")
    e(f"v_fma_f32 v{vL}, v{vT1}, v{vT0}, v{vL}")
    e(f"v_rcp_f32 v{vL}, v{vL}")
    e("s_nop 0")
    e(f"v_mul_f32 v{vM}, v{vM}, v{vL}")
    e(f"v_mul_f32 v{vT0}, v{vT0}, v{vL}")
    for half in range(2):
        e("s_waitcnt lgkmcnt(0)")
        for i in range(32):
            o = vO + 32*half + i
            e(f"v_mul_f32 v{o}, v{o}, v{vM}")
            e(f"v_fma_f32 v{o}, v{vS+i}, v{vT0}, v{o}")
        if half == 0:
            for i in range(8):
                e(f"ds_read_b128 v[{vS+4*i}:{vS+4*i+3}], v{vT4} offset:{(8+i)*1024}")
    for i in range(32):
        e(f"v_cvt_pk_bf16_f32 v{vQ+i}, v{vO+2*i}, v{vO+2*i+1}")
    for i in range(8):
        e(f"ds_write_b128 v{vT4}, v[{vQ+4*i}:{vQ+4*i+3}] offset:{i*1024}")
    e("s_waitcnt lgkmcnt(0)")
    e("s_barrier")
    lab("L_mergeDone")
    e("s_barrier")
    issue_wo(2); issue_wo(3)
    for j in range(8):
        vm.wait([('wo', j)])
        e("s_barrier")
        if j >= 1 and j + 3 < 8: issue_wo(j + 3)
        base = WOSLOT[j % 4]
        e(f"v_add_u32 v{vT0}, {base}, v{vWOA}")
        def wread(n):
            b = vVB + 4*(n % 8)
            e(f"ds_read_b64_tr_b16 v[{b}:{b+1}], v{vT0} offset:{n*64}")
            e(f"ds_read_b64_tr_b16 v[{b+2}:{b+3}], v{vT0} offset:{n*64 + 8*1152}")
        for n in range(7): wread(n)
        for n in range(9):
            b = vVB + 4*(n % 8)
            e(f"s_waitcnt lgkmcnt({2*min(6, 8-n)})")
            c = "0" if j == 0 else f"v[{vACC+16*n}:{vACC+16*n+15}]"
            e(f"v_mfma_f32_32x32x16_bf16 v[{vACC+16*n}:{vACC+16*n+15}], v[{b}:{b+3}], v[{vQ+4*j}:{vQ+4*j+3}], {c}")
            if n + 7 < 9: wread(n + 7)
    e("s_nop 7"); e("s_nop 7")
    e("s_barrier")
    e(f"s_lshl_b32 s{sT0}, s{sG}, 1")
    e(f"s_add_u32 s{sT0}, s{sT0}, s{sQH}")
    e(f"s_mul_i32 s{sT0}, s{sT0}, 36864")
    e(f"v_add_u32 v{vT4}, s{sT0}, v{vDUMP}")
    e(f"s_cmp_eq_u32 s{sHEAD}, 0")
    e("s_cbranch_scc1 L_head0")
    for i in range(36):
        e(f"ds_write_b128 v{vT4}, v[{vACC+4*i}:{vACC+4*i+3}] offset:{i*1024}")
    e("s_waitcnt lgkmcnt(0)")
    e("s_barrier")
    e("s_branch L_attn_done")
    lab("L_head0")
    e(f"s_lshl_b32 s{sT0}, s{sQH}, 5")
    e(f"v_add_u32 v{vST}, s{sT0}, v{vR16}")
    e(f"s_movk_i32 s{sT1}, 2304")
    e(f"v_mul_lo_u32 v{vST}, v{vST}, s{sT1}")
    e(f"v_lshl_add_u32 v{vST}, v{vH}, 4, v{vST}")
    e(f"s_mul_i32 s{sT0}, s{sG}, 1152")
    e(f"v_add_u32 v{vST}, s{sT0}, v{vST}")
    e("s_barrier")
    for i0 in range(0, 36, 6):
        for i in range(i0, i0+6):
            b = vVB + 4*(i - i0)
            e(f"ds_read_b128 v[{b}:{b+3}], v{vT4} offset:{i*1024}")
        for i in range(i0, i0+6):
            b = vVB + 4*(i - i0)
            e(f"s_waitcnt lgkmcnt({5 - (i - i0)})")
            for k in range(4):
                e(f"v_add_f32 v{vACC+4*i+k}, v{vACC+4*i+k}, v{b+k}")
            nt, i4 = divmod(i, 4)
            e(f"buffer_store_dwordx4 v[{vACC+4*i}:{vACC+4*i+3}], v{vST}, s[{sPT}:{sPT+3}], 0 offen offset:{nt*128 + i4*32}")
    lab("L_attn_done")
    e("s_endpgm")

def gen_reduce():
    lab("red_kernel")
    e("s_cmp_ge_u32 s2, 288")
    e("s_cbranch_scc1 L_red_done")
    e("s_load_dwordx2 s[4:5], s[0:1], 56")
    e("s_load_dwordx2 s[6:7], s[0:1], 40")
    e("s_mov_b32 s8, 0xe38e38f")
    e("s_mul_hi_u32 s9, s2, s8")
    e("s_mul_i32 s10, s9, 18")
    e("s_sub_u32 s10, s2, s10")
    e("s_lshl_b32 s10, s10, 8")
    e("v_add_u32 v1, s10, v0")
    e("v_lshlrev_b32 v2, 5, v1")
    e("v_lshlrev_b32 v3, 4, v1")
    e("s_waitcnt lgkmcnt(0)")
    e("s_mul_i32 s11, s9, 2359296")
    e("s_add_u32 s4, s4, s11")
    e("s_addc_u32 s5, s5, 0")
    e("s_mov_b32 s12, s4"); e("s_and_b32 s13, s5, 0xffff"); e("s_mov_b32 s14, 2359296"); e("s_mov_b32 s15, 0x00020000")
    e("s_mul_i32 s11, s9, 73728")
    e("s_add_u32 s6, s6, s11")
    e("s_addc_u32 s7, s7, 0")
    e("s_mov_b32 s16, s6"); e("s_and_b32 s17, s7, 0xffff"); e("s_mov_b32 s18, 73728"); e("s_mov_b32 s19, 0x00020000")
    for h in range(16):
        e(f"s_mov_b32 s20, {h*147456}")
        e(f"buffer_load_dwordx4 v[{8+8*h}:{8+8*h+3}], v2, s[12:15], s20 offen")
        e(f"buffer_load_dwordx4 v[{12+8*h}:{12+8*h+3}], v2, s[12:15], s20 offen offset:16")
    for h in range(1, 16):
        e(f"s_waitcnt vmcnt({2*(15-h)})")
        for k in range(8):
            e(f"v_add_f32 v{8+k}, v{8+k}, v{8+8*h+k}")
    for k in range(4):
        e(f"v_cvt_pk_bf16_f32 v{4+k}, v{8+2*k}, v{9+2*k}")
    e("buffer_store_dwordx4 v[4:7], v3, s[16:19], 0 offen")
    lab("L_red_done")
    e("s_endpgm")

HDR = """; Fused GQA attention: kernel 1 = Qproj + attention + out-proj partials, kernel 2 = reduce
; @launch kernel=attn_kernel grid=(256,1,1) block=(512,1,1) lds=163840
; @launch kernel=red_kernel grid=(288,1,1) block=(256,1,1) lds=0
.amdgcn_target "amdgcn-amd-amdhsa--gfx950"
.text
"""
def kd(name, nv):
    return f""".amdhsa_kernel {name}
  .amdhsa_next_free_vgpr {nv}
  .amdhsa_next_free_sgpr 64
  .amdhsa_accum_offset {nv}
  .amdhsa_group_segment_fixed_size 0
  .amdhsa_kernarg_size 64
  .amdhsa_user_sgpr_count 2
  .amdhsa_user_sgpr_kernarg_segment_ptr 1
  .amdhsa_system_sgpr_workgroup_id_x 1
.end_amdhsa_kernel
"""
out = [HDR]
for name, g in (("attn_kernel", gen_attn), ("red_kernel", gen_reduce)):
    L.clear()
    out.append(f".globl {name}\n.p2align 8\n.type {name},@function\n")
    g()
    out.append("\n".join(L) + "\n")
out.append('.section .rodata,"a"\n.p2align 6\n')
out.append(kd("attn_kernel", 256))
out.append(".p2align 6\n")
out.append(kd("red_kernel", 136))
open(sys.argv[1] if len(sys.argv) > 1 else "standalone__gqa_block_cached__near_ridge.s", "w").write("".join(out))
```

```python
import sys

L = []
def e(s): L.append("    " + s)
def lab(s): L.append(s + ":")
def cm(s): L.append("    ; " + s)

class VM:
    def __init__(self): self.q = []
    def issue(self, tag): self.q.append(tag)
    def wait(self, tags):
        last = -1
        for i, t in enumerate(self.q):
            if t in tags: last = i
        if last < 0: return
        n = len(self.q) - 1 - last
        assert n <= 63
        e(f"s_waitcnt vmcnt({n})")
        self.q = self.q[last+1:]
vm = VM()
import os
STAMP = os.environ.get("STAMP") == "1"
nst = [0]
def stamp():
    if not STAMP: return
    i = nst[0]; nst[0] += 1
    e("s_memtime s[60:61]")
    e("s_waitcnt lgkmcnt(0)")
    e(f"s_mov_b32 s{64+i}, s60")
def stamp_flush():
    if not STAMP: return
    e("s_cmp_lg_u32 s2, 37")
    e("s_cbranch_scc1 L_nostamp")
    e(f"s_cmp_lg_u32 s{sW}, 0")
    e("s_cbranch_scc1 L_nostamp")
    e("s_load_dwordx2 s[60:61], s[0:1], 48")
    e("s_waitcnt lgkmcnt(0)")
    e("s_mov_b32 s56, s60"); e("s_and_b32 s57, s61, 0xffff"); e("s_mov_b32 s58, 256"); e("s_mov_b32 s59, 0x00020000")
    e("v_mov_b32 v2, 0")
    for i in range(nst[0]):
        e(f"s_sub_u32 s62, s{64+i}, s64")
        e("v_mov_b32 v3, s62")
        e(f"buffer_store_dword v3, v2, s[56:59], 0 offen offset:{4*i}")
    e("s_waitcnt vmcnt(0)")
    lab("L_nostamp")

vLANE = 1
vKA = 2
vVA = 10
vKD = 14
vVD = 15
vM = 16; vL = 17
vT0 = 18; vT1 = 19; vT2 = 20; vT3 = 21; vT4 = 22; vT5 = 23
vQ = 24
vO = 56
vS = 120
vP = 152
vKB = 168
vVB = 200
vX = 56
vWQD = 232
vWQA = 233
vWOD = 236
vWOA = 241
vQW = 242
vDUMP = 243
vST = 244
vH = 245
vR16 = 246
vACC = 56

sK, sV, sWQ, sX, sWO, sPT = 4, 8, 12, 16, 20, 24
sW = 28; sG = 29; sQI = 30; sW1024 = 31
sT0 = 32; sT1 = 33; sT2 = 34; sT3 = 35
sC = 36
sSLOT = 37
sDELTA = 38
sHEAD = 39; sQH = 40

SLOT = 32768
def slot_of(t): return (t + 3) % 5

def srd(s, base_lo, base_hi, nbytes):
    e(f"s_mov_b32 s{s}, s{base_lo}")
    e(f"s_and_b32 s{s+1}, s{base_hi}, 0xffff")
    e(f"s_mov_b32 s{s+2}, {nbytes}")
    e(f"s_mov_b32 s{s+3}, 0x00020000")

def dma(voff, srdreg, soff_expr, m0_const, tag):
    e(f"s_add_u32 m0, s{sW1024}, {m0_const}")
    e(f"s_mov_b32 s{sT3}, {soff_expr}")
    e(f"buffer_load_dwordx4 v{voff}, s[{srdreg}:{srdreg+3}], s{sT3} offen lds")
    vm.issue(tag)

sROT = 41
sDK = 42; sDV = 43
vXD = 247; vXA = 248
ENT = 16384
def entry(item): return (item + 5) % 10
def issue_item(item):
    i, r = divmod(item, 4)
    t = 2*i + (r & 1)
    isV = r >= 2
    sl = entry(item) * ENT
    for k in range(2):
        e(f"s_add_u32 m0, s{sW1024}, {sl + k*8192}")
        e(f"s_add_u32 s{sT3}, s{sROT}, {t*16384 + k*8192}")
        e(f"s_and_b32 s{sT3}, s{sT3}, 0x3ffff")
        vo = vVD if isV else vKD
        sr = sV if isV else sK
        e(f"buffer_load_dwordx4 v{vo}, s[{sr}:{sr+3}], s{sT3} offen lds")
        vm.issue(('it', item))

HC = 20480
def issue_hc(j):
    sl = (j % 4) * HC
    for k in range(2):
        dma(vWQD, sWQ, (j*32 + k*16)*8192, sl + k*8192, ('hc', j))
    e(f"s_and_b32 s{sT2}, s{sW1024}, 0xfff")
    e(f"s_add_u32 m0, s{sT2}, {sl + 16384}")
    e(f"s_mov_b32 s{sT3}, {j*64}")
    e(f"buffer_load_dwordx4 v{vXD}, s[{sX}:{sX+3}], s{sT3} offen lds")
    vm.issue(('hc', j))

WOSLOT = [114688, 0, 36864, 73728]
def issue_wo(j):
    sl = WOSLOT[j % 4]
    for k in range(5):
        if k < 4:
            dma(vWOD + k, sWO, j*16*1152, sl + k*8192, ('wo', j))
        else:
            e(f"s_and_b32 s{sT2}, s{sW1024}, 0xfff")
            e(f"s_add_u32 m0, s{sT2}, {sl + 32768}")
            e(f"s_mov_b32 s{sT3}, {j*16*1152}")
            e(f"buffer_load_dwordx4 v{vWOD+4}, s[{sWO}:{sWO+3}], s{sT3} offen lds")
            vm.issue(('wo', j))

def gen_attn():
    lab("attn_kernel")
    e("s_cmp_ge_u32 s2, 256")
    e("s_cbranch_scc1 L_attn_done")
    e("s_load_dwordx4 s[40:43], s[0:1], 0")
    e("s_load_dwordx4 s[44:47], s[0:1], 16")
    e("s_load_dwordx2 s[48:49], s[0:1], 32")
    e("s_load_dwordx2 s[50:51], s[0:1], 56")
    stamp()
    e(f"v_and_b32 v{vLANE}, 63, v0")
    e(f"v_lshrrev_b32 v{vT0}, 6, v0")
    e("s_nop 0")
    e(f"v_readfirstlane_b32 s{sW}, v{vT0}")
    e("s_nop 3")
    e(f"s_lshr_b32 s{sG}, s{sW}, 2")
    e(f"s_and_b32 s{sQI}, s{sW}, 3")
    e(f"s_lshl_b32 s{sW1024}, s{sW}, 10")
    e(f"s_lshr_b32 s{sHEAD}, s{sQI}, 1")
    e("s_waitcnt lgkmcnt(0)")
    e(f"s_lshl_b32 s{sT0}, s2, 18")
    e(f"s_lshr_b32 s{sT1}, s2, 14")
    e(f"s_add_u32 s42, s42, s{sT0}")
    e(f"s_addc_u32 s43, s43, s{sT1}")
    e(f"s_add_u32 s44, s44, s{sT0}")
    e(f"s_addc_u32 s45, s45, s{sT1}")
    srd(sK, 42, 43, 262144)
    srd(sV, 44, 45, 262144)
    e(f"s_and_b32 s{sT0}, s2, 15")
    e(f"s_lshl_b32 s{sT1}, s{sT0}, 9")
    e(f"s_add_u32 s46, s46, s{sT1}")
    e(f"s_addc_u32 s47, s47, 0")
    srd(sWQ, 46, 47, 0)
    e(f"s_sub_u32 s{sWQ+2}, {576*8192}, s{sT1}")
    e(f"s_lshr_b32 s{sT1}, s2, 4")
    e(f"s_mul_i32 s{sT2}, s{sT1}, 73728")
    e(f"s_add_u32 s40, s40, s{sT2}")
    e(f"s_addc_u32 s41, s41, 0")
    srd(sX, 40, 41, 73728)
    e(f"s_mul_i32 s{sT2}, s{sT0}, {256*1152}")
    e(f"s_add_u32 s48, s48, s{sT2}")
    e(f"s_addc_u32 s49, s49, 0")
    srd(sWO, 48, 49, 256*1152)
    e(f"s_mul_i32 s{sT2}, s2, 147456")
    e(f"s_add_u32 s50, s50, s{sT2}")
    e(f"s_addc_u32 s51, s51, 0")
    srd(sPT, 50, 51, 147456)
    e(f"s_and_b32 s{sQH}, s{sQI}, 1")
    e(f"s_lshr_b32 s{sROT}, s2, 3")
    e(f"s_and_b32 s{sROT}, s{sROT}, 15")
    e(f"s_lshl_b32 s{sROT}, s{sROT}, 14")
    e(f"s_mov_b32 s{sC}, 0x3e0293ee")
    e(f"v_lshrrev_b32 v{vH}, 5, v{vLANE}")
    e(f"v_and_b32 v{vR16}, 31, v{vLANE}")
    e(f"v_lshrrev_b32 v{vT0}, 2, v{vLANE}")
    e(f"s_lshl_b32 s{sT0}, s{sQI}, 4")
    e(f"v_add_u32 v{vT0}, s{sT0}, v{vT0}")
    e(f"s_movk_i32 s{sT1}, 1152")
    e(f"v_mul_lo_u32 v{vT0}, v{vT0}, s{sT1}")
    e(f"v_bfe_u32 v{vT1}, v{vLANE}, 4, 2")
    e(f"v_and_b32 v{vT2}, 3, v{vLANE}")
    e(f"v_xor_b32 v{vT1}, v{vT1}, v{vT2}")
    e(f"v_lshl_add_u32 v{vXD}, v{vT1}, 4, v{vT0}")
    e(f"s_lshl_b32 s{sT0}, s{sQH}, 5")
    e(f"v_add_u32 v{vT0}, s{sT0}, v{vR16}")
    e(f"v_bfe_u32 v{vT1}, v{vLANE}, 2, 2")
    e(f"v_lshlrev_b32 v{vT0}, 6, v{vT0}")
    e(f"v_add_u32 v{vT0}, 16384, v{vT0}")
    for ks in range(2):
        e(f"v_or_b32 v{vT2}, {2*ks}, v{vH}")
        e(f"v_xor_b32 v{vT2}, v{vT2}, v{vT1}")
        e(f"v_lshl_add_u32 v{vXA+ks}, v{vT2}, 4, v{vT0}")
    e(f"s_lshl_b32 s{sT0}, s{sW}, 1")
    e(f"v_add_u32 v{vT1}, s{sT0}, v{vH}")
    e(f"v_and_b32 v{vT2}, 3, v{vT1}")
    e(f"v_lshlrev_b32 v{vT2}, 2, v{vT2}")
    e(f"v_xor_b32 v{vT2}, v{vT2}, v{vR16}")
    e(f"v_lshlrev_b32 v{vT2}, 4, v{vT2}")
    e(f"v_lshl_add_u32 v{vWQD}, v{vT1}, 13, v{vT2}")
    issue_hc(0); issue_hc(1); issue_hc(2)
    e(f"v_lshrrev_b32 v{vT0}, 4, v{vLANE}")
    e(f"v_and_b32 v{vT1}, 15, v{vLANE}")
    e(f"s_lshl_b32 s{sT0}, s{sQI}, 2")
    e(f"v_add_u32 v{vT2}, s{sT0}, v{vT0}")
    e(f"v_xor_b32 v{vT2}, v{vT2}, v{vT1}")
    e(f"v_lshlrev_b32 v{vT2}, 4, v{vT2}")
    e(f"s_lshl_b32 s{sT0}, s{sW}, 2")
    e(f"v_add_u32 v{vT3}, s{sT0}, v{vT0}")
    e(f"v_lshl_add_u32 v{vKD}, v{vT3}, 8, v{vT2}")
    e(f"v_lshlrev_b32 v{vT2}, 2, v{vT0}")
    e(f"v_xor_b32 v{vT2}, v{vT2}, v{vT1}")
    e(f"v_lshlrev_b32 v{vT2}, 4, v{vT2}")
    e(f"v_lshl_add_u32 v{vVD}, v{vT3}, 8, v{vT2}")
    for it_ in range(5): issue_item(it_)
    e(f"v_and_b32 v{vT0}, 15, v{vLANE}")
    for ks in range(8):
        e(f"v_or_b32 v{vT1}, {2*ks}, v{vH}")
        e(f"v_xor_b32 v{vT1}, v{vT1}, v{vT0}")
        e(f"v_lshlrev_b32 v{vT1}, 4, v{vT1}")
        e(f"v_lshl_add_u32 v{vKA+ks}, v{vR16}, 8, v{vT1}")
    e(f"v_bfe_u32 v{vT0}, v{vLANE}, 4, 1")
    e(f"v_bfe_u32 v{vT1}, v{vLANE}, 2, 2")
    e(f"v_and_b32 v{vT2}, 3, v{vLANE}")
    e(f"v_lshlrev_b32 v{vT3}, 5, v{vT0}")
    e(f"v_lshl_add_u32 v{vT3}, v{vT2}, 3, v{vT3}")
    e(f"v_lshl_add_u32 v{vT4}, v{vH}, 2, v{vT1}")
    e(f"v_lshl_add_u32 v{vT4}, v{vT4}, 8, v{vT3}")
    for dt in range(4):
        e(f"v_xor_b32 v{vT5}, {dt}, v{vT1}")
        e(f"v_lshl_add_u32 v{vVA+dt}, v{vT5}, 6, v{vT4}")
    e(f"v_lshl_add_u32 v{vT4}, v{vH}, 3, v{vT1}")
    e(f"v_lshl_add_u32 v{vT4}, v{vT4}, 9, v{vT3}")
    e(f"s_lshl_b32 s{sT0}, s{sHEAD}, 2")
    e(f"s_lshl_b32 s{sT1}, s{sG}, 1")
    e(f"s_add_u32 s{sT0}, s{sT0}, s{sT1}")
    for dt in range(2):
        e(f"s_add_u32 s{sT1}, s{sT0}, {dt}")
        e(f"v_xor_b32 v{vT5}, s{sT1}, v{vT1}")
        e(f"v_lshl_add_u32 v{vWQA+dt}, v{vT5}, 6, v{vT4}")
    e(f"s_lshl_b32 s{sT0}, s{sHEAD}, 4")
    e(f"v_lshl_add_u32 v{vT4}, v{vH}, 2, v{vT1}")
    e(f"v_add_u32 v{vT4}, s{sT0}, v{vT4}")
    e(f"s_movk_i32 s{sT1}, 1152")
    e(f"v_mul_lo_u32 v{vT4}, v{vT4}, s{sT1}")
    e(f"s_mul_i32 s{sT0}, s{sG}, 576")
    e(f"v_add3_u32 v{vWOA}, v{vT4}, s{sT0}, v{vT3}")
    e(f"v_lshlrev_b32 v{vDUMP}, 4, v{vLANE}")
    for k in range(5):
        if k < 4:
            e(f"s_add_u32 s{sT0}, s{sW1024}, {k*8192}")
        else:
            e(f"s_and_b32 s{sT0}, s{sW1024}, 0xfff")
            e(f"s_add_u32 s{sT0}, s{sT0}, 32768")
        e(f"v_add_u32 v{vT0}, s{sT0}, v{vDUMP}")
        e(f"v_mov_b32 v{vT1}, 18432")
        e(f"v_cmp_ge_u32 vcc, v{vT0}, v{vT1}")
        e(f"v_mov_b32 v{vT2}, 129024")
        e("s_nop 1")
        e(f"v_cndmask_b32 v{vT2}, 0, v{vT2}, vcc")
        e(f"v_add_u32 v{vWOD+k}, v{vT0}, v{vT2}")
    e(f"s_lshl_b32 s{sT0}, s{sQI}, 13")
    e(f"s_add_u32 s{sT0}, s{sT0}, 49152")
    e(f"v_lshlrev_b32 v{vQW}, 8, v{vR16}")
    e(f"v_add_u32 v{vQW}, s{sT0}, v{vQW}")
    e(f"v_lshl_add_u32 v{vQW}, v{vH}, 3, v{vQW}")
    for j in range(18):
        vm.wait([('hc', j)])
        e("s_barrier")
        if j + 3 < 18: issue_hc(j + 3)
        base = (j % 4) * HC
        for ks in range(2):
            e(f"ds_read_b128 v[{vKB+4*ks}:{vKB+4*ks+3}], v{vXA+ks} offset:{base}")
        WA = [vWQA, vWQA+1]
        if base > 40960:
            e(f"v_add_u32 v{vT0}, {base}, v{vWQA}")
            e(f"v_add_u32 v{vT1}, {base}, v{vWQA+1}")
            WA = [vT0, vT1]; base = 0
        for n in range(4):
            ks, dt = divmod(n, 2)
            bb = vVB + 4*n
            e(f"ds_read_b64_tr_b16 v[{bb}:{bb+1}], v{WA[dt]} offset:{base + ks*8192}")
            e(f"ds_read_b64_tr_b16 v[{bb+2}:{bb+3}], v{WA[dt]} offset:{base + ks*8192 + 2048}")
        for n in range(4):
            ks, dt = divmod(n, 2)
            bb = vVB + 4*n
            e(f"s_waitcnt lgkmcnt({2*(3-n)})")
            x = vKB + 4*ks
            c = "0" if (j == 0 and ks == 0) else f"v[{vQ+16*dt}:{vQ+16*dt+15}]"
            e(f"v_mfma_f32_32x32x16_bf16 v[{vQ+16*dt}:{vQ+16*dt+15}], v[{bb}:{bb+3}], v[{x}:{x+3}], {c}")
    e("s_barrier")
    stamp()
    issue_item(5); issue_item(6); issue_item(7)
    e("s_nop 7"); e("s_nop 7")
    e(f"v_and_b32 v{vT0}, 15, v{vLANE}")
    for dt in range(2):
        for i4 in range(4):
            a = vQ + 16*dt + 4*i4
            e(f"v_cvt_pk_bf16_f32 v{vT2}, v{a}, v{a+1}")
            e(f"v_cvt_pk_bf16_f32 v{vT3}, v{a+2}, v{a+3}")
            e(f"s_lshl_b32 s{sT0}, s{sG}, 3")
            e(f"s_add_u32 s{sT0}, s{sT0}, {dt*4 + i4}")
            e(f"v_xor_b32 v{vT4}, s{sT0}, v{vT0}")
            e(f"v_lshl_add_u32 v{vT4}, v{vT4}, 4, v{vQW}")
            e(f"ds_write_b64 v{vT4}, v[{vT2}:{vT3}]")
    e("s_waitcnt lgkmcnt(0)")
    e("s_barrier")
    e(f"s_lshl_b32 s{sT0}, s{sQI}, 13")
    e(f"s_add_u32 s{sT0}, s{sT0}, 49152")
    for ks in range(8):
        e(f"v_add_u32 v{vT0}, s{sT0}, v{vKA+ks}")
        e(f"ds_read_b128 v[{vQ+4*ks}:{vQ+4*ks+3}], v{vT0}")
    e(f"v_mov_b32 v{vM}, 0xff7fffff")
    e(f"v_mov_b32 v{vL}, 0")
    for i in range(64): e(f"v_mov_b32 v{vO+i}, 0")
    def sel(sreg, va, vb):
        e(f"s_mov_b32 s{sreg}, {vb}")
        e(f"s_cmp_eq_u32 s{sG}, 0")
        e(f"s_cselect_b32 s{sreg}, {va}, s{sreg}")
    sel(sDK, entry(0)*ENT, entry(1)*ENT)
    sel(sDV, entry(2)*ENT, entry(3)*ENT)
    for r in range(vKA, vKA+8): e(f"v_add_u32 v{r}, s{sDK}, v{r}")
    for r in range(vVA, vVA+4): e(f"v_add_u32 v{r}, s{sDV}, v{r}")
    e("s_waitcnt lgkmcnt(0)")
    for it in range(8):
        cm(f"---- iteration {it} ----")
        stamp()
        vm.wait([('it', 4*it), ('it', 4*it+1)])
        e("s_barrier")
        stamp()
        for item in (4*it+8, 4*it+9):
            if item < 32: issue_item(item)
        if it == 7: issue_wo(1)
        def kread(n):
            kvt, ks = divmod(n, 8)
            b = vKB + 4*(n % 8)
            e(f"ds_read_b128 v[{b}:{b+3}], v{vKA+ks} offset:{kvt*8192}")
        for n in range(8): kread(n)
        for n in range(16):
            kvt, ks = divmod(n, 8)
            b = vKB + 4*(n % 8)
            e(f"s_waitcnt lgkmcnt({min(7, 15-n)})")
            c = "0" if ks == 0 else f"v[{vS+16*kvt}:{vS+16*kvt+15}]"
            e(f"v_mfma_f32_32x32x16_bf16 v[{vS+16*kvt}:{vS+16*kvt+15}], v[{b}:{b+3}], v[{vQ+4*ks}:{vQ+4*ks+3}], {c}")
            if n + 8 < 16: kread(n + 8)
        pv = [(k4, dt) for k4 in range(4) for dt in range(4)]
        def vread(n):
            k4, dt = pv[n]
            b = vVB + 4*(n % 8)
            off = k4*16*256
            e(f"ds_read_b64_tr_b16 v[{b}:{b+1}], v{vVA+dt} offset:{off}")
            e(f"ds_read_b64_tr_b16 v[{b+2}:{b+3}], v{vVA+dt} offset:{off + 2048}")
        vm.wait([('it', 4*it+2), ('it', 4*it+3)])
        e("s_barrier")
        for item in (4*it+10, 4*it+11):
            if item < 32: issue_item(item)
        if it == 6: issue_wo(0)
        for n in range(6): vread(n)
        e("s_nop 7")
        e(f"v_max3_f32 v{vT0}, v{vS}, v{vS+1}, v{vS+2}")
        for i in range(3, 31, 2):
            e(f"v_max3_f32 v{vT0}, v{vT0}, v{vS+i}, v{vS+i+1}")
        e(f"v_max_f32 v{vT0}, v{vT0}, v{vS+31}")
        e(f"v_mov_b32 v{vT1}, v{vT0}")
        e("s_nop 1")
        e(f"v_permlane32_swap_b32 v{vT0}, v{vT1}")
        e(f"v_max_f32 v{vT0}, v{vT0}, v{vT1}")
        e(f"v_mul_f32 v{vT0}, s{sC}, v{vT0}")
        e(f"v_max_f32 v{vT0}, v{vT0}, v{vM}")
        e(f"v_sub_f32 v{vT1}, v{vM}, v{vT0}")
        e(f"v_exp_f32 v{vT1}, v{vT1}")
        e(f"v_mov_b32 v{vM}, v{vT0}")
        for i in range(32):
            e(f"v_fma_f32 v{vS+i}, v{vS+i}, s{sC}, -v{vT0}")
        for i in range(32):
            e(f"v_exp_f32 v{vS+i}, v{vS+i}")
        e(f"v_mul_f32 v{vL}, v{vL}, v{vT1}")
        for i in range(64):
            e(f"v_mul_f32 v{vO+i}, v{vO+i}, v{vT1}")
        for i in range(16):
            e(f"v_cvt_pk_bf16_f32 v{vP+i}, v{vS+2*i}, v{vS+2*i+1}")
        e(f"v_add_f32 v{vT2}, v{vS}, v{vS+1}")
        e(f"v_add_f32 v{vT3}, v{vS+2}, v{vS+3}")
        for i in range(4, 32, 2):
            e(f"v_add_f32 v{vT2}, v{vT2}, v{vS+i}")
            e(f"v_add_f32 v{vT3}, v{vT3}, v{vS+i+1}")
        e(f"v_add_f32 v{vL}, v{vL}, v{vT2}")
        e(f"v_add_f32 v{vL}, v{vL}, v{vT3}")
        for n in range(16):
            k4, dt = pv[n]
            b = vVB + 4*(n % 8)
            outstanding_after = 2*min(5, 15-n)
            e(f"s_waitcnt lgkmcnt({outstanding_after})")
            p = vP + 4*k4
            e(f"v_mfma_f32_32x32x16_bf16 v[{vO+16*dt}:{vO+16*dt+15}], v[{b}:{b+3}], v[{p}:{p+3}], v[{vO+16*dt}:{vO+16*dt+15}]")
            if n + 6 < 16: vread(n + 6)
        if it < 7:
            d = lambda x: (entry(x+4) - entry(x)) * ENT
            sel(sDK, d(4*it), d(4*it+1))
            sel(sDV, d(4*it+2), d(4*it+3))
            for r in range(vKA, vKA+8): e(f"v_add_u32 v{r}, s{sDK}, v{r}")
            for r in range(vVA, vVA+4): e(f"v_add_u32 v{r}, s{sDV}, v{r}")
    stamp()
    e("s_nop 7"); e("s_nop 7")
    e(f"v_mov_b32 v{vT1}, v{vL}")
    e("s_nop 1")
    e(f"v_permlane32_swap_b32 v{vL}, v{vT1}")
    e(f"v_add_f32 v{vL}, v{vL}, v{vT1}")
    e("s_barrier")
    e(f"s_lshl_b32 s{sT0}, s{sW}, 13")
    e(f"s_add_u32 s{sT0}, s{sT0}, 36864")
    e(f"v_add_u32 v{vT4}, s{sT0}, v{vDUMP}")
    e(f"s_xor_b32 s{sT0}, s{sT0}, 0")
    e(f"s_xor_b32 s{sT1}, s{sW}, 4")
    e(f"s_lshl_b32 s{sT0}, s{sT1}, 13")
    e(f"s_add_u32 s{sT0}, s{sT0}, 36864")
    e(f"v_add_u32 v{vT5}, s{sT0}, v{vDUMP}")
    e(f"s_lshl_b32 s{sT0}, s{sW}, 9")
    e(f"s_add_u32 s{sT0}, s{sT0}, 102400")
    e(f"v_lshl_add_u32 v{vT2}, v{vLANE}, 2, s{sT0}")
    e(f"s_lshl_b32 s{sT0}, s{sT1}, 9")
    e(f"s_add_u32 s{sT0}, s{sT0}, 102400")
    e(f"v_lshl_add_u32 v{vT3}, v{vLANE}, 2, s{sT0}")
    e(f"ds_write_b32 v{vT2}, v{vM}")
    e(f"ds_write_b32 v{vT2}, v{vL} offset:256")
    e(f"s_cmp_eq_u32 s{sG}, 0")
    e("s_cbranch_scc1 L_mergeA")
    def merge(keep, give):
        for i in range(8):
            e(f"ds_write_b128 v{vT4}, v[{give+4*i}:{give+4*i+3}] offset:{i*1024}")
        e("s_waitcnt lgkmcnt(0)")
        e("s_barrier")
        e(f"ds_read_b32 v{vT0}, v{vT3}")
        e(f"ds_read_b32 v{vT1}, v{vT3} offset:256")
        for i in range(8):
            e(f"ds_read_b128 v[{vS+4*i}:{vS+4*i+3}], v{vT5} offset:{i*1024}")
        e("s_waitcnt lgkmcnt(8)")
        e(f"v_max_f32 v{vT2}, v{vM}, v{vT0}")
        e(f"v_sub_f32 v{vM}, v{vM}, v{vT2}")
        e(f"v_sub_f32 v{vT0}, v{vT0}, v{vT2}")
        e(f"v_exp_f32 v{vM}, v{vM}")
        e(f"v_exp_f32 v{vT0}, v{vT0}")
        e("s_nop 0")
        e(f"v_mul_f32 v{vL}, v{vL}, v{vM}")
        e(f"v_fma_f32 v{vL}, v{vT1}, v{vT0}, v{vL}")
        e(f"v_rcp_f32 v{vL}, v{vL}")
        e("s_nop 0")
        e(f"v_mul_f32 v{vM}, v{vM}, v{vL}")
        e(f"v_mul_f32 v{vT0}, v{vT0}, v{vL}")
        e("s_waitcnt lgkmcnt(0)")
        for i in range(32):
            o = keep + i
            e(f"v_mul_f32 v{o}, v{o}, v{vM}")
            e(f"v_fma_f32 v{o}, v{vS+i}, v{vT0}, v{o}")
        pk = vQ + (0 if keep == vO else 16)
        other = vQ + (16 if keep == vO else 0)
        for i in range(16):
            e(f"v_cvt_pk_bf16_f32 v{pk+i}, v{keep+2*i}, v{keep+2*i+1}")
        for i in range(4):
            e(f"ds_write_b128 v{vT5}, v[{pk+4*i}:{pk+4*i+3}] offset:{i*1024}")
        e("s_waitcnt lgkmcnt(0)")
        e("s_barrier")
        for i in range(4):
            e(f"ds_read_b128 v[{other+4*i}:{other+4*i+3}], v{vT4} offset:{i*1024}")
        e("s_waitcnt lgkmcnt(0)")
    merge(vO+32, vO)
    e("s_branch L_mergeDone")
    lab("L_mergeA")
    merge(vO, vO+32)
    lab("L_mergeDone")
    e("s_barrier")
    issue_wo(2); issue_wo(3)
    stamp()
    for j in range(8):
        vm.wait([('wo', j)])
        e("s_barrier")
        if j >= 1 and j + 3 < 8: issue_wo(j + 3)
        base = WOSLOT[j % 4]
        e(f"v_add_u32 v{vT0}, {base}, v{vWOA}")
        def wread(n):
            b = vVB + 4*(n % 8)
            e(f"ds_read_b64_tr_b16 v[{b}:{b+1}], v{vT0} offset:{n*64}")
            e(f"ds_read_b64_tr_b16 v[{b+2}:{b+3}], v{vT0} offset:{n*64 + 8*1152}")
        for n in range(7): wread(n)
        for n in range(9):
            b = vVB + 4*(n % 8)
            e(f"s_waitcnt lgkmcnt({2*min(6, 8-n)})")
            c = "0" if j == 0 else f"v[{vACC+16*n}:{vACC+16*n+15}]"
            e(f"v_mfma_f32_32x32x16_bf16 v[{vACC+16*n}:{vACC+16*n+15}], v[{b}:{b+3}], v[{vQ+4*j}:{vQ+4*j+3}], {c}")
            if n + 7 < 9: wread(n + 7)
    e("s_nop 7"); e("s_nop 7")
    e("s_barrier")
    stamp()
    e(f"s_lshl_b32 s{sT0}, s{sQH}, 5")
    e(f"v_add_u32 v{vST}, s{sT0}, v{vR16}")
    e(f"s_movk_i32 s{sT1}, 2320")
    e(f"v_mul_lo_u32 v{vST}, v{vST}, s{sT1}")
    e(f"v_lshl_add_u32 v{vST}, v{vH}, 4, v{vST}")
    e(f"s_mul_i32 s{sT0}, s{sG}, 1152")
    e(f"v_add_u32 v{vST}, s{sT0}, v{vST}")
    e(f"s_cmp_eq_u32 s{sHEAD}, 0")
    e("s_cbranch_scc1 L_head0")
    for i in range(36):
        nt, i4 = divmod(i, 4)
        e(f"ds_write_b128 v{vST}, v[{vACC+4*i}:{vACC+4*i+3}] offset:{nt*128 + i4*32}")
    e("s_waitcnt lgkmcnt(0)")
    e("s_barrier")
    e("s_branch L_headdone")
    lab("L_head0")
    e("s_barrier")
    for i0 in range(0, 36, 6):
        for i in range(i0, i0+6):
            bb = vVB + 4*(i - i0)
            nt, i4 = divmod(i, 4)
            e(f"ds_read_b128 v[{bb}:{bb+3}], v{vST} offset:{nt*128 + i4*32}")
        for i in range(i0, i0+6):
            bb = vVB + 4*(i - i0)
            nt, i4 = divmod(i, 4)
            e(f"s_waitcnt lgkmcnt({5 - (i - i0)})")
            for k in range(4):
                e(f"v_add_f32 v{vACC+4*i+k}, v{vACC+4*i+k}, v{bb+k}")
        for i in range(i0, i0+6):
            nt, i4 = divmod(i, 4)
            e(f"ds_write_b128 v{vST}, v[{vACC+4*i}:{vACC+4*i+3}] offset:{nt*128 + i4*32}")
    e("s_waitcnt lgkmcnt(0)")
    lab("L_headdone")
    e("s_barrier")
    e(f"s_mul_i32 s{sT0}, s{sW}, {8*2320}")
    e(f"v_add_u32 v{vT0}, s{sT0}, v{vDUMP}")
    e(f"s_mul_i32 s{sT1}, s{sW}, {8*2304}")
    for r in range(8):
        for k in range(2):
            bb = vO + 8*r + 4*k
            e(f"ds_read_b128 v[{bb}:{bb+3}], v{vT0} offset:{r*2320 + k*1024}")
    e(f"v_cmp_gt_u32 vcc, 16, v{vLANE}")
    for r in range(8):
        e(f"s_waitcnt lgkmcnt({14 - 2*r})")
        e(f"s_add_u32 s{sT2}, s{sT1}, {r*2304}")
        for k in range(2):
            bb = vO + 8*r + 4*k
            e(f"buffer_store_dwordx4 v[{bb}:{bb+3}], v{vDUMP}, s[{sPT}:{sPT+3}], s{sT2} offen offset:{k*1024}")
    e("s_and_saveexec_b64 s[44:45], vcc")
    for r in range(8):
        bb = vS + 4*r
        e(f"ds_read_b128 v[{bb}:{bb+3}], v{vT0} offset:{r*2320 + 2048}")
    for r in range(8):
        bb = vS + 4*r
        e(f"s_waitcnt lgkmcnt({7 - r})")
        e(f"s_add_u32 s{sT2}, s{sT1}, {r*2304}")
        e(f"buffer_store_dwordx4 v[{bb}:{bb+3}], v{vDUMP}, s[{sPT}:{sPT+3}], s{sT2} offen offset:2048")
    e("s_mov_b64 exec, s[44:45]")
    stamp()
    e("s_waitcnt vmcnt(0)")
    stamp()
    stamp_flush()
    lab("L_attn_done")
    e("s_endpgm")

def gen_reduce():
    lab("red_kernel")
    e("s_cmp_ge_u32 s2, 288")
    e("s_cbranch_scc1 L_red_done")
    e("s_load_dwordx2 s[4:5], s[0:1], 56")
    e("s_load_dwordx2 s[6:7], s[0:1], 40")
    e("s_mov_b32 s8, 0xe38e38f")
    e("s_mul_hi_u32 s9, s2, s8")
    e("s_mul_i32 s10, s9, 18")
    e("s_sub_u32 s10, s2, s10")
    e("s_lshl_b32 s10, s10, 8")
    e("v_add_u32 v1, s10, v0")
    e("v_lshlrev_b32 v2, 5, v1")
    e("v_lshlrev_b32 v3, 4, v1")
    e("s_waitcnt lgkmcnt(0)")
    e("s_mul_i32 s11, s9, 2359296")
    e("s_add_u32 s4, s4, s11")
    e("s_addc_u32 s5, s5, 0")
    e("s_mov_b32 s12, s4"); e("s_and_b32 s13, s5, 0xffff"); e("s_mov_b32 s14, 2359296"); e("s_mov_b32 s15, 0x00020000")
    e("s_mul_i32 s11, s9, 73728")
    e("s_add_u32 s6, s6, s11")
    e("s_addc_u32 s7, s7, 0")
    e("s_mov_b32 s16, s6"); e("s_and_b32 s17, s7, 0xffff"); e("s_mov_b32 s18, 73728"); e("s_mov_b32 s19, 0x00020000")
    for h in range(16):
        e(f"s_mov_b32 s20, {h*147456}")
        e(f"buffer_load_dwordx4 v[{8+8*h}:{8+8*h+3}], v2, s[12:15], s20 offen")
        e(f"buffer_load_dwordx4 v[{12+8*h}:{12+8*h+3}], v2, s[12:15], s20 offen offset:16")
    for h in range(1, 16):
        e(f"s_waitcnt vmcnt({2*(15-h)})")
        for k in range(8):
            e(f"v_add_f32 v{8+k}, v{8+k}, v{8+8*h+k}")
    for k in range(4):
        e(f"v_cvt_pk_bf16_f32 v{4+k}, v{8+2*k}, v{9+2*k}")
    e("buffer_store_dwordx4 v[4:7], v3, s[16:19], 0 offen")
    lab("L_red_done")
    e("s_endpgm")

HDR = """; Fused GQA attention: kernel 1 = Qproj + attention + out-proj partials, kernel 2 = reduce
; @launch kernel=attn_kernel grid=(256,1,1) block=(512,1,1) lds=163840
; @launch kernel=red_kernel grid=(288,1,1) block=(256,1,1) lds=0
.amdgcn_target "amdgcn-amd-amdhsa--gfx950"
.text
"""
def kd(name, nv):
    return f""".amdhsa_kernel {name}
  .amdhsa_next_free_vgpr {nv}
  .amdhsa_next_free_sgpr 100
  .amdhsa_accum_offset {nv}
  .amdhsa_group_segment_fixed_size 0
  .amdhsa_kernarg_size 64
  .amdhsa_user_sgpr_count 2
  .amdhsa_user_sgpr_kernarg_segment_ptr 1
  .amdhsa_system_sgpr_workgroup_id_x 1
.end_amdhsa_kernel
"""
out = [HDR]
for name, g in (("attn_kernel", gen_attn), ("red_kernel", gen_reduce)):
    L.clear()
    out.append(f".globl {name}\n.p2align 8\n.type {name},@function\n")
    g()
    out.append("\n".join(L) + "\n")
out.append('.section .rodata,"a"\n.p2align 6\n')
out.append(kd("attn_kernel", 256))
out.append(".p2align 6\n")
out.append(kd("red_kernel", 136))
open(sys.argv[1] if len(sys.argv) > 1 else "standalone__gqa_block_cached__near_ridge.s", "w").write("".join(out))
```

```python
import sys

L = []
def e(s): L.append("    " + s)
def lab(s): L.append(s + ":")
def cm(s): L.append("    ; " + s)

class VM:
    def __init__(self): self.q = []
    def issue(self, tag): self.q.append(tag)
    def wait(self, tags):
        last = -1
        for i, t in enumerate(self.q):
            if t in tags: last = i
        if last < 0: return
        n = len(self.q) - 1 - last
        assert n <= 63
        e(f"s_waitcnt vmcnt({n})")
        self.q = self.q[last+1:]
vm = VM()
import os
STAMP = os.environ.get("STAMP") == "1"
nst = [0]
def stamp():
    if not STAMP: return
    i = nst[0]; nst[0] += 1
    e("s_memtime s[60:61]")
    e("s_waitcnt lgkmcnt(0)")
    e(f"s_mov_b32 s{64+i}, s60")
def stamp_flush():
    if not STAMP: return
    e("s_cmp_lg_u32 s2, 37")
    e("s_cbranch_scc1 L_nostamp")
    e(f"s_cmp_lg_u32 s{sW}, 0")
    e("s_cbranch_scc1 L_nostamp")
    e("s_load_dwordx2 s[60:61], s[0:1], 48")
    e("s_waitcnt lgkmcnt(0)")
    e("s_mov_b32 s56, s60"); e("s_and_b32 s57, s61, 0xffff"); e("s_mov_b32 s58, 256"); e("s_mov_b32 s59, 0x00020000")
    e("v_mov_b32 v2, 0")
    for i in range(nst[0]):
        e(f"s_sub_u32 s62, s{64+i}, s64")
        e("v_mov_b32 v3, s62")
        e(f"buffer_store_dword v3, v2, s[56:59], 0 offen offset:{4*i}")
    e("s_waitcnt vmcnt(0)")
    lab("L_nostamp")

vLANE = 1
vKA = 2
vVA = 10
vKD = 14
vVD = 15
vM = 16; vL = 17
vT0 = 18; vT1 = 19; vT2 = 20; vT3 = 21; vT4 = 22; vT5 = 23
vQ = 24
vO = 56
vS = 120
vP = 152
vKB = 168
vVB = 200
vX = 56
vWQD = 232
vWQA = 233
vWOD = 236
vWOA = 241
vQW = 242
vDUMP = 243
vST = 244
vH = 245
vR16 = 246
vACC = 56

sK, sV, sWQ, sX, sWO, sPT = 4, 8, 12, 16, 20, 24
sW = 28; sG = 29; sQI = 30; sW1024 = 31
sT0 = 32; sT1 = 33; sT2 = 34; sT3 = 35
sC = 36
sSLOT = 37
sDELTA = 38
sHEAD = 39; sQH = 40

SLOT = 32768
def slot_of(t): return (t + 3) % 5

def srd(s, base_lo, base_hi, nbytes):
    e(f"s_mov_b32 s{s}, s{base_lo}")
    e(f"s_and_b32 s{s+1}, s{base_hi}, 0xffff")
    e(f"s_mov_b32 s{s+2}, {nbytes}")
    e(f"s_mov_b32 s{s+3}, 0x00020000")

def dma(voff, srdreg, soff_expr, m0_const, tag):
    e(f"s_add_u32 m0, s{sW1024}, {m0_const}")
    e(f"s_mov_b32 s{sT3}, {soff_expr}")
    e(f"buffer_load_dwordx4 v{voff}, s[{srdreg}:{srdreg+3}], s{sT3} offen lds")
    vm.issue(tag)

sROT = 41
sDK = 42; sDV = 43
vXD = 247; vXA = 248
ENT = 16384
def entry(item): return (item + 5) % 10
def issue_item(item):
    i, r = divmod(item, 4)
    t = 2*i + (r & 1)
    isV = r >= 2
    sl = entry(item) * ENT
    for k in range(2):
        e(f"s_add_u32 m0, s{sW1024}, {sl + k*8192}")
        e(f"s_add_u32 s{sT3}, s{sROT}, {t*16384 + k*8192}")
        e(f"s_and_b32 s{sT3}, s{sT3}, 0x3ffff")
        vo = vVD if isV else vKD
        sr = sV if isV else sK
        e(f"buffer_load_dwordx4 v{vo}, s[{sr}:{sr+3}], s{sT3} offen lds")
        vm.issue(('it', item))

def issue_item_p(item):
    i, r = divmod(item, 4)
    t = 2*i + (r & 1)
    isV = r >= 2
    sl = entry(item) * ENT
    for k in range(4):
        e(f"s_add_u32 m0, s{sW1024}, {sl + k*4096 - 4096}")
        e(f"s_add_u32 s{sT3}, s{sROT}, {t*16384 + k*4096}")
        e(f"s_and_b32 s{sT3}, s{sT3}, 0x3ffff")
        vo = 251 if isV else 250
        sr = sV if isV else sK
        e(f"buffer_load_dwordx4 v{vo}, s[{sr}:{sr+3}], s{sT3} offen lds")
        vm.issue(('it', item))
HC = 20480
def issue_hc_l(j):
    sl = (j % 4) * HC
    for k in range(4):
        dma(vWQD, sWQ, (j*32 + k*8)*8192, sl + k*4096, ('hc', j))
    e(f"s_add_u32 m0, s{sW1024}, {sl + 16384}")
    e(f"s_mov_b32 s{sT3}, {j*64}")
    e(f"buffer_load_dwordx4 v{vXD}, s[{sX}:{sX+3}], s{sT3} offen lds")
    vm.issue(('hc', j))
def issue_hc(j):
    sl = (j % 4) * HC
    for k in range(2):
        dma(vWQD, sWQ, (j*32 + k*16)*8192, sl + k*8192, ('hc', j))
    e(f"s_and_b32 s{sT2}, s{sW1024}, 0xfff")
    e(f"s_add_u32 m0, s{sT2}, {sl + 16384}")
    e(f"s_mov_b32 s{sT3}, {j*64}")
    e(f"buffer_load_dwordx4 v{vXD}, s[{sX}:{sX+3}], s{sT3} offen lds")
    vm.issue(('hc', j))

WOSLOT = [114688, 0, 36864, 73728]
def issue_wo(j):
    sl = WOSLOT[j % 4]
    for k in range(5):
        if k < 4:
            dma(vWOD + k, sWO, j*16*1152, sl + k*8192, ('wo', j))
        else:
            e(f"s_and_b32 s{sT2}, s{sW1024}, 0xfff")
            e(f"s_add_u32 m0, s{sT2}, {sl + 32768}")
            e(f"s_mov_b32 s{sT3}, {j*16*1152}")
            e(f"buffer_load_dwordx4 v{vWOD+4}, s[{sWO}:{sWO+3}], s{sT3} offen lds")
            vm.issue(('wo', j))

def gen_attn():
    lab("attn_kernel")
    e("s_cmp_ge_u32 s2, 256")
    e("s_cbranch_scc1 L_attn_done")
    e("s_load_dwordx4 s[40:43], s[0:1], 0")
    e("s_load_dwordx4 s[44:47], s[0:1], 16")
    e("s_load_dwordx2 s[48:49], s[0:1], 32")
    e("s_load_dwordx2 s[50:51], s[0:1], 56")
    stamp()
    e(f"v_and_b32 v{vLANE}, 63, v0")
    e(f"v_lshrrev_b32 v{vT0}, 6, v0")
    e("s_nop 0")
    e(f"v_readfirstlane_b32 s{sW}, v{vT0}")
    e("s_nop 3")
    e(f"s_lshr_b32 s{sG}, s{sW}, 2")
    e(f"s_and_b32 s{sQI}, s{sW}, 3")
    e(f"s_lshl_b32 s{sW1024}, s{sW}, 10")
    e(f"s_lshr_b32 s{sHEAD}, s{sQI}, 1")
    e("s_waitcnt lgkmcnt(0)")
    e(f"s_lshl_b32 s{sT0}, s2, 18")
    e(f"s_lshr_b32 s{sT1}, s2, 14")
    e(f"s_add_u32 s42, s42, s{sT0}")
    e(f"s_addc_u32 s43, s43, s{sT1}")
    e(f"s_add_u32 s44, s44, s{sT0}")
    e(f"s_addc_u32 s45, s45, s{sT1}")
    srd(sK, 42, 43, 262144)
    srd(sV, 44, 45, 262144)
    e(f"s_and_b32 s{sT0}, s2, 15")
    e(f"s_lshl_b32 s{sT1}, s{sT0}, 9")
    e(f"s_add_u32 s46, s46, s{sT1}")
    e(f"s_addc_u32 s47, s47, 0")
    srd(sWQ, 46, 47, 0)
    e(f"s_sub_u32 s{sWQ+2}, {576*8192}, s{sT1}")
    e(f"s_lshr_b32 s{sT1}, s2, 4")
    e(f"s_mul_i32 s{sT2}, s{sT1}, 73728")
    e(f"s_add_u32 s40, s40, s{sT2}")
    e(f"s_addc_u32 s41, s41, 0")
    srd(sX, 40, 41, 73728)
    e(f"s_mul_i32 s{sT2}, s{sT0}, {256*1152}")
    e(f"s_add_u32 s48, s48, s{sT2}")
    e(f"s_addc_u32 s49, s49, 0")
    srd(sWO, 48, 49, 256*1152)
    e(f"s_mul_i32 s{sT2}, s2, 147456")
    e(f"s_add_u32 s50, s50, s{sT2}")
    e(f"s_addc_u32 s51, s51, 0")
    srd(sPT, 50, 51, 147456)
    e(f"s_and_b32 s{sQH}, s{sQI}, 1")
    e(f"s_lshr_b32 s{sROT}, s2, 3")
    e(f"s_and_b32 s{sROT}, s{sROT}, 15")
    e(f"s_lshl_b32 s{sROT}, s{sROT}, 14")
    e(f"s_mov_b32 s{sC}, 0x3e0293ee")
    e(f"v_lshrrev_b32 v{vH}, 5, v{vLANE}")
    e(f"v_and_b32 v{vR16}, 31, v{vLANE}")
    e(f"v_lshrrev_b32 v{vT0}, 2, v{vLANE}")
    e(f"s_lshl_b32 s{sT0}, s{sQI}, 4")
    e(f"v_add_u32 v{vT0}, s{sT0}, v{vT0}")
    e(f"s_movk_i32 s{sT1}, 1152")
    e(f"v_mul_lo_u32 v{vT0}, v{vT0}, s{sT1}")
    e(f"v_bfe_u32 v{vT1}, v{vLANE}, 4, 2")
    e(f"v_and_b32 v{vT2}, 3, v{vLANE}")
    e(f"v_xor_b32 v{vT1}, v{vT1}, v{vT2}")
    e(f"v_lshl_add_u32 v{vXD}, v{vT1}, 4, v{vT0}")
    e(f"s_lshl_b32 s{sT0}, s{sQH}, 5")
    e(f"v_add_u32 v{vT0}, s{sT0}, v{vR16}")
    e(f"v_bfe_u32 v{vT1}, v{vLANE}, 2, 2")
    e(f"v_lshlrev_b32 v{vT0}, 6, v{vT0}")
    e(f"v_add_u32 v{vT0}, 16384, v{vT0}")
    for ks in range(2):
        e(f"v_or_b32 v{vT2}, {2*ks}, v{vH}")
        e(f"v_xor_b32 v{vT2}, v{vT2}, v{vT1}")
        e(f"v_lshl_add_u32 v{vXA+ks}, v{vT2}, 4, v{vT0}")
    e(f"s_lshl_b32 s{sT0}, s{sW}, 1")
    e(f"v_add_u32 v{vT1}, s{sT0}, v{vH}")
    e(f"v_and_b32 v{vT2}, 3, v{vT1}")
    e(f"v_lshlrev_b32 v{vT2}, 2, v{vT2}")
    e(f"v_xor_b32 v{vT2}, v{vT2}, v{vR16}")
    e(f"v_lshlrev_b32 v{vT2}, 4, v{vT2}")
    e(f"v_lshl_add_u32 v{vWQD}, v{vT1}, 13, v{vT2}")
    e(f"v_lshrrev_b32 v{vT0}, 4, v{vLANE}")
    e(f"v_and_b32 v{vT1}, 15, v{vLANE}")
    e(f"s_lshl_b32 s{sT0}, s{sQI}, 2")
    e(f"v_add_u32 v{vT2}, s{sT0}, v{vT0}")
    e(f"v_xor_b32 v{vT2}, v{vT2}, v{vT1}")
    e(f"v_lshlrev_b32 v{vT2}, 4, v{vT2}")
    e(f"s_lshl_b32 s{sT0}, s{sW}, 2")
    e(f"v_add_u32 v{vT3}, s{sT0}, v{vT0}")
    e(f"v_lshl_add_u32 v{vKD}, v{vT3}, 8, v{vT2}")
    e(f"v_lshlrev_b32 v{vT2}, 2, v{vT0}")
    e(f"v_xor_b32 v{vT2}, v{vT2}, v{vT1}")
    e(f"v_lshlrev_b32 v{vT2}, 4, v{vT2}")
    e(f"v_lshl_add_u32 v{vVD}, v{vT3}, 8, v{vT2}")
    e(f"v_and_b32 v{vT0}, 15, v{vLANE}")
    for ks in range(8):
        e(f"v_or_b32 v{vT1}, {2*ks}, v{vH}")
        e(f"v_xor_b32 v{vT1}, v{vT1}, v{vT0}")
        e(f"v_lshlrev_b32 v{vT1}, 4, v{vT1}")
        e(f"v_lshl_add_u32 v{vKA+ks}, v{vR16}, 8, v{vT1}")
    e(f"v_bfe_u32 v{vT0}, v{vLANE}, 4, 1")
    e(f"v_bfe_u32 v{vT1}, v{vLANE}, 2, 2")
    e(f"v_and_b32 v{vT2}, 3, v{vLANE}")
    e(f"v_lshlrev_b32 v{vT3}, 5, v{vT0}")
    e(f"v_lshl_add_u32 v{vT3}, v{vT2}, 3, v{vT3}")
    e(f"v_lshl_add_u32 v{vT4}, v{vH}, 2, v{vT1}")
    e(f"v_lshl_add_u32 v{vT4}, v{vT4}, 8, v{vT3}")
    for dt in range(4):
        e(f"v_xor_b32 v{vT5}, {dt}, v{vT1}")
        e(f"v_lshl_add_u32 v{vVA+dt}, v{vT5}, 6, v{vT4}")
    e(f"v_lshl_add_u32 v{vT4}, v{vH}, 3, v{vT1}")
    e(f"v_lshl_add_u32 v{vT4}, v{vT4}, 9, v{vT3}")
    e(f"s_lshl_b32 s{sT0}, s{sHEAD}, 2")
    e(f"s_lshl_b32 s{sT1}, s{sG}, 1")
    e(f"s_add_u32 s{sT0}, s{sT0}, s{sT1}")
    for dt in range(2):
        e(f"s_add_u32 s{sT1}, s{sT0}, {dt}")
        e(f"v_xor_b32 v{vT5}, s{sT1}, v{vT1}")
        e(f"v_lshl_add_u32 v{vWQA+dt}, v{vT5}, 6, v{vT4}")
    e(f"s_lshl_b32 s{sT0}, s{sHEAD}, 4")
    e(f"v_lshl_add_u32 v{vT4}, v{vH}, 2, v{vT1}")
    e(f"v_add_u32 v{vT4}, s{sT0}, v{vT4}")
    e(f"s_movk_i32 s{sT1}, 1152")
    e(f"v_mul_lo_u32 v{vT4}, v{vT4}, s{sT1}")
    e(f"s_mul_i32 s{sT0}, s{sG}, 576")
    e(f"v_add3_u32 v{vWOA}, v{vT4}, s{sT0}, v{vT3}")
    e(f"v_lshlrev_b32 v{vDUMP}, 4, v{vLANE}")
    for k in range(5):
        if k < 4:
            e(f"s_add_u32 s{sT0}, s{sW1024}, {k*8192}")
        else:
            e(f"s_and_b32 s{sT0}, s{sW1024}, 0xfff")
            e(f"s_add_u32 s{sT0}, s{sT0}, 32768")
        e(f"v_add_u32 v{vT0}, s{sT0}, v{vDUMP}")
        e(f"v_mov_b32 v{vT1}, 18432")
        e(f"v_cmp_ge_u32 vcc, v{vT0}, v{vT1}")
        e(f"v_mov_b32 v{vT2}, 129024")
        e("s_nop 1")
        e(f"v_cndmask_b32 v{vT2}, 0, v{vT2}, vcc")
        e(f"v_add_u32 v{vWOD+k}, v{vT0}, v{vT2}")
    e(f"s_lshl_b32 s{sT0}, s{sQI}, 13")
    e(f"s_add_u32 s{sT0}, s{sT0}, 49152")
    e(f"v_lshlrev_b32 v{vQW}, 8, v{vR16}")
    e(f"v_add_u32 v{vQW}, s{sT0}, v{vQW}")
    e(f"v_lshl_add_u32 v{vQW}, v{vH}, 3, v{vQW}")
    def qproj(role):
        if role == 'L':
            issue_hc_l(0); issue_hc_l(1); issue_hc_l(2)
        else:
            e(f"v_subrev_u32 v250, 4096, v{vKD}")
            e(f"v_subrev_u32 v251, 4096, v{vVD}")
            for it_ in range(5): issue_item_p(it_)
        for j in range(18):
            if role == 'L': vm.wait([('hc', j)])
            e("s_barrier")
            if role == 'L' and j + 3 < 18: issue_hc_l(j + 3)
            base = (j % 4) * HC
            for ks in range(2):
                e(f"ds_read_b128 v[{vKB+4*ks}:{vKB+4*ks+3}], v{vXA+ks} offset:{base}")
            WA = [vWQA, vWQA+1]
            if base > 40960:
                e(f"v_add_u32 v{vT0}, {base}, v{vWQA}")
                e(f"v_add_u32 v{vT1}, {base}, v{vWQA+1}")
                WA = [vT0, vT1]; base = 0
            for n in range(4):
                ks, dt = divmod(n, 2)
                bb = vVB + 4*n
                e(f"ds_read_b64_tr_b16 v[{bb}:{bb+1}], v{WA[dt]} offset:{base + ks*8192}")
                e(f"ds_read_b64_tr_b16 v[{bb+2}:{bb+3}], v{WA[dt]} offset:{base + ks*8192 + 2048}")
            for n in range(4):
                ks, dt = divmod(n, 2)
                bb = vVB + 4*n
                e(f"s_waitcnt lgkmcnt({2*(3-n)})")
                x = vKB + 4*ks
                c = "0" if (j == 0 and ks == 0) else f"v[{vQ+16*dt}:{vQ+16*dt+15}]"
                e(f"v_mfma_f32_32x32x16_bf16 v[{vQ+16*dt}:{vQ+16*dt+15}], v[{bb}:{bb+3}], v[{x}:{x+3}], {c}")
    e(f"s_cmp_eq_u32 s{sG}, 0")
    e("s_cbranch_scc0 L_qpP")
    qproj('L')
    assert not vm.q
    e("s_branch L_qpDone")
    lab("L_qpP")
    qproj('P')
    lab("L_qpDone")
    e("s_barrier")
    stamp()
    issue_item(5); issue_item(6); issue_item(7)
    e("s_nop 7"); e("s_nop 7")
    e(f"v_and_b32 v{vT0}, 15, v{vLANE}")
    for dt in range(2):
        for i4 in range(4):
            a = vQ + 16*dt + 4*i4
            e(f"v_cvt_pk_bf16_f32 v{vT2}, v{a}, v{a+1}")
            e(f"v_cvt_pk_bf16_f32 v{vT3}, v{a+2}, v{a+3}")
            e(f"s_lshl_b32 s{sT0}, s{sG}, 3")
            e(f"s_add_u32 s{sT0}, s{sT0}, {dt*4 + i4}")
            e(f"v_xor_b32 v{vT4}, s{sT0}, v{vT0}")
            e(f"v_lshl_add_u32 v{vT4}, v{vT4}, 4, v{vQW}")
            e(f"ds_write_b64 v{vT4}, v[{vT2}:{vT3}]")
    e("s_waitcnt lgkmcnt(0)")
    e("s_barrier")
    e(f"s_lshl_b32 s{sT0}, s{sQI}, 13")
    e(f"s_add_u32 s{sT0}, s{sT0}, 49152")
    for ks in range(8):
        e(f"v_add_u32 v{vT0}, s{sT0}, v{vKA+ks}")
        e(f"ds_read_b128 v[{vQ+4*ks}:{vQ+4*ks+3}], v{vT0}")
    e(f"v_mov_b32 v{vM}, 0xff7fffff")
    e(f"v_mov_b32 v{vL}, 0")
    for i in range(64): e(f"v_mov_b32 v{vO+i}, 0")
    def sel(sreg, va, vb):
        e(f"s_mov_b32 s{sreg}, {vb}")
        e(f"s_cmp_eq_u32 s{sG}, 0")
        e(f"s_cselect_b32 s{sreg}, {va}, s{sreg}")
    sel(sDK, entry(0)*ENT, entry(1)*ENT)
    sel(sDV, entry(2)*ENT, entry(3)*ENT)
    for r in range(vKA, vKA+8): e(f"v_add_u32 v{r}, s{sDK}, v{r}")
    for r in range(vVA, vVA+4): e(f"v_add_u32 v{r}, s{sDV}, v{r}")
    e("s_waitcnt lgkmcnt(0)")
    for it in range(8):
        cm(f"---- iteration {it} ----")
        stamp()
        vm.wait([('it', 4*it), ('it', 4*it+1)])
        e("s_barrier")
        stamp()
        for item in (4*it+8, 4*it+9):
            if item < 32: issue_item(item)
        if it == 7: issue_wo(1)
        def kread(n):
            kvt, ks = divmod(n, 8)
            b = vKB + 4*(n % 8)
            e(f"ds_read_b128 v[{b}:{b+3}], v{vKA+ks} offset:{kvt*8192}")
        for n in range(8): kread(n)
        for n in range(16):
            kvt, ks = divmod(n, 8)
            b = vKB + 4*(n % 8)
            e(f"s_waitcnt lgkmcnt({min(7, 15-n)})")
            c = "0" if ks == 0 else f"v[{vS+16*kvt}:{vS+16*kvt+15}]"
            e(f"v_mfma_f32_32x32x16_bf16 v[{vS+16*kvt}:{vS+16*kvt+15}], v[{b}:{b+3}], v[{vQ+4*ks}:{vQ+4*ks+3}], {c}")
            if n + 8 < 16: kread(n + 8)
        pv = [(k4, dt) for k4 in range(4) for dt in range(4)]
        def vread(n):
            k4, dt = pv[n]
            b = vVB + 4*(n % 8)
            off = k4*16*256
            e(f"ds_read_b64_tr_b16 v[{b}:{b+1}], v{vVA+dt} offset:{off}")
            e(f"ds_read_b64_tr_b16 v[{b+2}:{b+3}], v{vVA+dt} offset:{off + 2048}")
        vm.wait([('it', 4*it+2), ('it', 4*it+3)])
        e("s_barrier")
        for item in (4*it+10, 4*it+11):
            if item < 32: issue_item(item)
        if it == 6: issue_wo(0)
        for n in range(6): vread(n)
        e("s_nop 7")
        e(f"v_max3_f32 v{vT0}, v{vS}, v{vS+1}, v{vS+2}")
        for i in range(3, 31, 2):
            e(f"v_max3_f32 v{vT0}, v{vT0}, v{vS+i}, v{vS+i+1}")
        e(f"v_max_f32 v{vT0}, v{vT0}, v{vS+31}")
        e(f"v_mov_b32 v{vT1}, v{vT0}")
        e("s_nop 1")
        e(f"v_permlane32_swap_b32 v{vT0}, v{vT1}")
        e(f"v_max_f32 v{vT0}, v{vT0}, v{vT1}")
        e(f"v_mul_f32 v{vT0}, s{sC}, v{vT0}")
        e(f"v_max_f32 v{vT0}, v{vT0}, v{vM}")
        e(f"v_sub_f32 v{vT1}, v{vM}, v{vT0}")
        e(f"v_exp_f32 v{vT1}, v{vT1}")
        e(f"v_mov_b32 v{vM}, v{vT0}")
        for i in range(32):
            e(f"v_fma_f32 v{vS+i}, v{vS+i}, s{sC}, -v{vT0}")
        for i in range(32):
            e(f"v_exp_f32 v{vS+i}, v{vS+i}")
        e(f"v_mul_f32 v{vL}, v{vL}, v{vT1}")
        for i in range(64):
            e(f"v_mul_f32 v{vO+i}, v{vO+i}, v{vT1}")
        for i in range(16):
            e(f"v_cvt_pk_bf16_f32 v{vP+i}, v{vS+2*i}, v{vS+2*i+1}")
        e(f"v_add_f32 v{vT2}, v{vS}, v{vS+1}")
        e(f"v_add_f32 v{vT3}, v{vS+2}, v{vS+3}")
        for i in range(4, 32, 2):
            e(f"v_add_f32 v{vT2}, v{vT2}, v{vS+i}")
            e(f"v_add_f32 v{vT3}, v{vT3}, v{vS+i+1}")
        e(f"v_add_f32 v{vL}, v{vL}, v{vT2}")
        e(f"v_add_f32 v{vL}, v{vL}, v{vT3}")
        for n in range(16):
            k4, dt = pv[n]
            b = vVB + 4*(n % 8)
            outstanding_after = 2*min(5, 15-n)
            e(f"s_waitcnt lgkmcnt({outstanding_after})")
            p = vP + 4*k4
            e(f"v_mfma_f32_32x32x16_bf16 v[{vO+16*dt}:{vO+16*dt+15}], v[{b}:{b+3}], v[{p}:{p+3}], v[{vO+16*dt}:{vO+16*dt+15}]")
            if n + 6 < 16: vread(n + 6)
        if it < 7:
            d = lambda x: (entry(x+4) - entry(x)) * ENT
            sel(sDK, d(4*it), d(4*it+1))
            sel(sDV, d(4*it+2), d(4*it+3))
            for r in range(vKA, vKA+8): e(f"v_add_u32 v{r}, s{sDK}, v{r}")
            for r in range(vVA, vVA+4): e(f"v_add_u32 v{r}, s{sDV}, v{r}")
    stamp()
    e("s_nop 7"); e("s_nop 7")
    e(f"v_mov_b32 v{vT1}, v{vL}")
    e("s_nop 1")
    e(f"v_permlane32_swap_b32 v{vL}, v{vT1}")
    e(f"v_add_f32 v{vL}, v{vL}, v{vT1}")
    e("s_barrier")
    e(f"s_lshl_b32 s{sT0}, s{sW}, 13")
    e(f"s_add_u32 s{sT0}, s{sT0}, 36864")
    e(f"v_add_u32 v{vT4}, s{sT0}, v{vDUMP}")
    e(f"s_xor_b32 s{sT0}, s{sT0}, 0")
    e(f"s_xor_b32 s{sT1}, s{sW}, 4")
    e(f"s_lshl_b32 s{sT0}, s{sT1}, 13")
    e(f"s_add_u32 s{sT0}, s{sT0}, 36864")
    e(f"v_add_u32 v{vT5}, s{sT0}, v{vDUMP}")
    e(f"s_lshl_b32 s{sT0}, s{sW}, 9")
    e(f"s_add_u32 s{sT0}, s{sT0}, 102400")
    e(f"v_lshl_add_u32 v{vT2}, v{vLANE}, 2, s{sT0}")
    e(f"s_lshl_b32 s{sT0}, s{sT1}, 9")
    e(f"s_add_u32 s{sT0}, s{sT0}, 102400")
    e(f"v_lshl_add_u32 v{vT3}, v{vLANE}, 2, s{sT0}")
    e(f"ds_write_b32 v{vT2}, v{vM}")
    e(f"ds_write_b32 v{vT2}, v{vL} offset:256")
    e(f"s_cmp_eq_u32 s{sG}, 0")
    e("s_cbranch_scc1 L_mergeA")
    def merge(keep, give):
        for i in range(8):
            e(f"ds_write_b128 v{vT4}, v[{give+4*i}:{give+4*i+3}] offset:{i*1024}")
        e("s_waitcnt lgkmcnt(0)")
        e("s_barrier")
        e(f"ds_read_b32 v{vT0}, v{vT3}")
        e(f"ds_read_b32 v{vT1}, v{vT3} offset:256")
        for i in range(8):
            e(f"ds_read_b128 v[{vS+4*i}:{vS+4*i+3}], v{vT5} offset:{i*1024}")
        e("s_waitcnt lgkmcnt(8)")
        e(f"v_max_f32 v{vT2}, v{vM}, v{vT0}")
        e(f"v_sub_f32 v{vM}, v{vM}, v{vT2}")
        e(f"v_sub_f32 v{vT0}, v{vT0}, v{vT2}")
        e(f"v_exp_f32 v{vM}, v{vM}")
        e(f"v_exp_f32 v{vT0}, v{vT0}")
        e("s_nop 0")
        e(f"v_mul_f32 v{vL}, v{vL}, v{vM}")
        e(f"v_fma_f32 v{vL}, v{vT1}, v{vT0}, v{vL}")
        e(f"v_rcp_f32 v{vL}, v{vL}")
        e("s_nop 0")
        e(f"v_mul_f32 v{vM}, v{vM}, v{vL}")
        e(f"v_mul_f32 v{vT0}, v{vT0}, v{vL}")
        e("s_waitcnt lgkmcnt(0)")
        for i in range(32):
            o = keep + i
            e(f"v_mul_f32 v{o}, v{o}, v{vM}")
            e(f"v_fma_f32 v{o}, v{vS+i}, v{vT0}, v{o}")
        pk = vQ + (0 if keep == vO else 16)
        other = vQ + (16 if keep == vO else 0)
        for i in range(16):
            e(f"v_cvt_pk_bf16_f32 v{pk+i}, v{keep+2*i}, v{keep+2*i+1}")
        for i in range(4):
            e(f"ds_write_b128 v{vT5}, v[{pk+4*i}:{pk+4*i+3}] offset:{i*1024}")
        e("s_waitcnt lgkmcnt(0)")
        e("s_barrier")
        for i in range(4):
            e(f"ds_read_b128 v[{other+4*i}:{other+4*i+3}], v{vT4} offset:{i*1024}")
        e("s_waitcnt lgkmcnt(0)")
    merge(vO+32, vO)
    e("s_branch L_mergeDone")
    lab("L_mergeA")
    merge(vO, vO+32)
    lab("L_mergeDone")
    e("s_barrier")
    issue_wo(2); issue_wo(3)
    stamp()
    for j in range(8):
        vm.wait([('wo', j)])
        e("s_barrier")
        if j >= 1 and j + 3 < 8: issue_wo(j + 3)
        base = WOSLOT[j % 4]
        e(f"v_add_u32 v{vT0}, {base}, v{vWOA}")
        def wread(n):
            b = vVB + 4*(n % 8)
            e(f"ds_read_b64_tr_b16 v[{b}:{b+1}], v{vT0} offset:{n*64}")
            e(f"ds_read_b64_tr_b16 v[{b+2}:{b+3}], v{vT0} offset:{n*64 + 8*1152}")
        for n in range(7): wread(n)
        for n in range(9):
            b = vVB + 4*(n % 8)
            e(f"s_waitcnt lgkmcnt({2*min(6, 8-n)})")
            c = "0" if j == 0 else f"v[{vACC+16*n}:{vACC+16*n+15}]"
            e(f"v_mfma_f32_32x32x16_bf16 v[{vACC+16*n}:{vACC+16*n+15}], v[{b}:{b+3}], v[{vQ+4*j}:{vQ+4*j+3}], {c}")
            if n + 7 < 9: wread(n + 7)
    e("s_nop 7"); e("s_nop 7")
    e("s_barrier")
    stamp()
    e(f"s_lshl_b32 s{sT0}, s{sQH}, 5")
    e(f"v_add_u32 v{vST}, s{sT0}, v{vR16}")
    e(f"s_movk_i32 s{sT1}, 2320")
    e(f"v_mul_lo_u32 v{vST}, v{vST}, s{sT1}")
    e(f"v_lshl_add_u32 v{vST}, v{vH}, 4, v{vST}")
    e(f"s_mul_i32 s{sT0}, s{sG}, 1152")
    e(f"v_add_u32 v{vST}, s{sT0}, v{vST}")
    e(f"s_cmp_eq_u32 s{sHEAD}, 0")
    e("s_cbranch_scc1 L_head0")
    for i in range(36):
        nt, i4 = divmod(i, 4)
        e(f"ds_write_b128 v{vST}, v[{vACC+4*i}:{vACC+4*i+3}] offset:{nt*128 + i4*32}")
    e("s_waitcnt lgkmcnt(0)")
    e("s_barrier")
    e("s_branch L_headdone")
    lab("L_head0")
    e("s_barrier")
    for i0 in range(0, 36, 6):
        for i in range(i0, i0+6):
            bb = vVB + 4*(i - i0)
            nt, i4 = divmod(i, 4)
            e(f"ds_read_b128 v[{bb}:{bb+3}], v{vST} offset:{nt*128 + i4*32}")
        for i in range(i0, i0+6):
            bb = vVB + 4*(i - i0)
            nt, i4 = divmod(i, 4)
            e(f"s_waitcnt lgkmcnt({5 - (i - i0)})")
            for k in range(4):
                e(f"v_add_f32 v{vACC+4*i+k}, v{vACC+4*i+k}, v{bb+k}")
        for i in range(i0, i0+6):
            nt, i4 = divmod(i, 4)
            e(f"ds_write_b128 v{vST}, v[{vACC+4*i}:{vACC+4*i+3}] offset:{nt*128 + i4*32}")
    e("s_waitcnt lgkmcnt(0)")
    lab("L_headdone")
    e("s_barrier")
    e(f"s_mul_i32 s{sT0}, s{sW}, {8*2320}")
    e(f"v_add_u32 v{vT0}, s{sT0}, v{vDUMP}")
    e(f"s_mul_i32 s{sT1}, s{sW}, {8*2304}")
    for r in range(8):
        for k in range(2):
            bb = vO + 8*r + 4*k
            e(f"ds_read_b128 v[{bb}:{bb+3}], v{vT0} offset:{r*2320 + k*1024}")
    e(f"v_cmp_gt_u32 vcc, 16, v{vLANE}")
    for r in range(8):
        e(f"s_waitcnt lgkmcnt({14 - 2*r})")
        e(f"s_add_u32 s{sT2}, s{sT1}, {r*2304}")
        for k in range(2):
            bb = vO + 8*r + 4*k
            e(f"buffer_store_dwordx4 v[{bb}:{bb+3}], v{vDUMP}, s[{sPT}:{sPT+3}], s{sT2} offen offset:{k*1024}")
    e("s_and_saveexec_b64 s[44:45], vcc")
    for r in range(8):
        bb = vS + 4*r
        e(f"ds_read_b128 v[{bb}:{bb+3}], v{vT0} offset:{r*2320 + 2048}")
    for r in range(8):
        bb = vS + 4*r
        e(f"s_waitcnt lgkmcnt({7 - r})")
        e(f"s_add_u32 s{sT2}, s{sT1}, {r*2304}")
        e(f"buffer_store_dwordx4 v[{bb}:{bb+3}], v{vDUMP}, s[{sPT}:{sPT+3}], s{sT2} offen offset:2048")
    e("s_mov_b64 exec, s[44:45]")
    stamp()
    e("s_waitcnt vmcnt(0)")
    stamp()
    stamp_flush()
    lab("L_attn_done")
    e("s_endpgm")

def gen_reduce():
    lab("red_kernel")
    e("s_cmp_ge_u32 s2, 288")
    e("s_cbranch_scc1 L_red_done")
    e("s_load_dwordx2 s[4:5], s[0:1], 56")
    e("s_load_dwordx2 s[6:7], s[0:1], 40")
    e("s_mov_b32 s8, 0xe38e38f")
    e("s_mul_hi_u32 s9, s2, s8")
    e("s_mul_i32 s10, s9, 18")
    e("s_sub_u32 s10, s2, s10")
    e("s_lshl_b32 s10, s10, 8")
    e("v_add_u32 v1, s10, v0")
    e("v_lshlrev_b32 v2, 5, v1")
    e("v_lshlrev_b32 v3, 4, v1")
    e("s_waitcnt lgkmcnt(0)")
    e("s_mul_i32 s11, s9, 2359296")
    e("s_add_u32 s4, s4, s11")
    e("s_addc_u32 s5, s5, 0")
    e("s_mov_b32 s12, s4"); e("s_and_b32 s13, s5, 0xffff"); e("s_mov_b32 s14, 2359296"); e("s_mov_b32 s15, 0x00020000")
    e("s_mul_i32 s11, s9, 73728")
    e("s_add_u32 s6, s6, s11")
    e("s_addc_u32 s7, s7, 0")
    e("s_mov_b32 s16, s6"); e("s_and_b32 s17, s7, 0xffff"); e("s_mov_b32 s18, 73728"); e("s_mov_b32 s19, 0x00020000")
    for h in range(16):
        e(f"s_mov_b32 s20, {h*147456}")
        e(f"buffer_load_dwordx4 v[{8+8*h}:{8+8*h+3}], v2, s[12:15], s20 offen")
        e(f"buffer_load_dwordx4 v[{12+8*h}:{12+8*h+3}], v2, s[12:15], s20 offen offset:16")
    for h in range(1, 16):
        e(f"s_waitcnt vmcnt({2*(15-h)})")
        for k in range(8):
            e(f"v_add_f32 v{8+k}, v{8+k}, v{8+8*h+k}")
    for k in range(4):
        e(f"v_cvt_pk_bf16_f32 v{4+k}, v{8+2*k}, v{9+2*k}")
    e("buffer_store_dwordx4 v[4:7], v3, s[16:19], 0 offen")
    lab("L_red_done")
    e("s_endpgm")

HDR = """; Fused GQA attention: kernel 1 = Qproj + attention + out-proj partials, kernel 2 = reduce
; @launch kernel=attn_kernel grid=(256,1,1) block=(512,1,1) lds=163840
; @launch kernel=red_kernel grid=(288,1,1) block=(256,1,1) lds=0
.amdgcn_target "amdgcn-amd-amdhsa--gfx950"
.text
"""
def kd(name, nv):
    return f""".amdhsa_kernel {name}
  .amdhsa_next_free_vgpr {nv}
  .amdhsa_next_free_sgpr 100
  .amdhsa_accum_offset {nv}
  .amdhsa_group_segment_fixed_size 0
  .amdhsa_kernarg_size 64
  .amdhsa_user_sgpr_count 2
  .amdhsa_user_sgpr_kernarg_segment_ptr 1
  .amdhsa_system_sgpr_workgroup_id_x 1
.end_amdhsa_kernel
"""
out = [HDR]
for name, g in (("attn_kernel", gen_attn), ("red_kernel", gen_reduce)):
    L.clear()
    out.append(f".globl {name}\n.p2align 8\n.type {name},@function\n")
    g()
    out.append("\n".join(L) + "\n")
out.append('.section .rodata,"a"\n.p2align 6\n')
out.append(kd("attn_kernel", 256))
out.append(".p2align 6\n")
out.append(kd("red_kernel", 136))
open(sys.argv[1] if len(sys.argv) > 1 else "standalone__gqa_block_cached__near_ridge.s", "w").write("".join(out))
```

```python
import sys

L = []
def e(s): L.append("    " + s)
def lab(s): L.append(s + ":")
def cm(s): L.append("    ; " + s)

class VM:
    def __init__(self): self.q = []
    def issue(self, tag): self.q.append(tag)
    def wait(self, tags):
        last = -1
        for i, t in enumerate(self.q):
            if t in tags: last = i
        if last < 0: return
        n = len(self.q) - 1 - last
        assert n <= 63
        e(f"s_waitcnt vmcnt({n})")
        self.q = self.q[last+1:]
vm = VM()
import os
STAMP = os.environ.get("STAMP") == "1"
nst = [0]
def stamp():
    if not STAMP: return
    i = nst[0]; nst[0] += 1
    e("s_memtime s[60:61]")
    e("s_waitcnt lgkmcnt(0)")
    e(f"s_mov_b32 s{64+i}, s60")
def stamp_flush():
    if not STAMP: return
    e("s_cmp_lg_u32 s2, 37")
    e("s_cbranch_scc1 L_nostamp")
    e(f"s_cmp_lg_u32 s{sW}, 0")
    e("s_cbranch_scc1 L_nostamp")
    e("s_load_dwordx2 s[60:61], s[0:1], 48")
    e("s_waitcnt lgkmcnt(0)")
    e("s_mov_b32 s56, s60"); e("s_and_b32 s57, s61, 0xffff"); e("s_mov_b32 s58, 256"); e("s_mov_b32 s59, 0x00020000")
    e("v_mov_b32 v2, 0")
    for i in range(nst[0]):
        e(f"s_sub_u32 s62, s{64+i}, s64")
        e("v_mov_b32 v3, s62")
        e(f"buffer_store_dword v3, v2, s[56:59], 0 offen offset:{4*i}")
    e("s_waitcnt vmcnt(0)")
    lab("L_nostamp")

vLANE = 1
vKA = 2
vVA = 10
vKD = 14
vVD = 15
vM = 16; vL = 17
vT0 = 18; vT1 = 19; vT2 = 20; vT3 = 21; vT4 = 22; vT5 = 23
vQ = 24
vO = 56
vS = 120
vP = 152
vKB = 168
vVB = 200
vX = 56
vWQD = 232
vWQA = 233
vWOD = 236
vWOA = 241
vQW = 242
vDUMP = 243
vST = 244
vH = 245
vR16 = 246
vACC = 56

sK, sV, sWQ, sX, sWO, sPT = 4, 8, 12, 16, 20, 24
sW = 28; sG = 29; sQI = 30; sW1024 = 31
sT0 = 32; sT1 = 33; sT2 = 34; sT3 = 35
sC = 36
sSLOT = 37
sDELTA = 38
sHEAD = 39; sQH = 40

SLOT = 32768
def slot_of(t): return (t + 3) % 5

def srd(s, base_lo, base_hi, nbytes):
    e(f"s_mov_b32 s{s}, s{base_lo}")
    e(f"s_and_b32 s{s+1}, s{base_hi}, 0xffff")
    e(f"s_mov_b32 s{s+2}, {nbytes}")
    e(f"s_mov_b32 s{s+3}, 0x00020000")

def dma(voff, srdreg, soff_expr, m0_const, tag):
    e(f"s_add_u32 m0, s{sW1024}, {m0_const}")
    e(f"s_mov_b32 s{sT3}, {soff_expr}")
    e(f"buffer_load_dwordx4 v{voff}, s[{srdreg}:{srdreg+3}], s{sT3} offen lds")
    vm.issue(tag)

sROT = 41
sDK = 42; sDV = 43
vXA = 247; vXR = 222
ENT = 16384
def entry(item): return (item + 7) % 10
def issue_item(item):
    i, r = divmod(item, 4)
    t = 2*i + (r & 1)
    isV = r >= 2
    sl = entry(item) * ENT
    for k in range(2):
        e(f"s_add_u32 m0, s{sW1024}, {sl + k*8192}")
        e(f"s_add_u32 s{sT3}, s{sROT}, {t*16384 + k*8192}")
        e(f"s_and_b32 s{sT3}, s{sT3}, 0x3ffff")
        vo = vVD if isV else vKD
        sr = sV if isV else sK
        e(f"buffer_load_dwordx4 v{vo}, s[{sr}:{sr+3}], s{sT3} offen lds")
        vm.issue(('it', item))

def issue_item_p(item):
    i, r = divmod(item, 4)
    t = 2*i + (r & 1)
    isV = r >= 2
    sl = entry(item) * ENT
    for k in range(4):
        e(f"s_add_u32 m0, s{sW1024}, {sl + k*4096 - 4096}")
        e(f"s_add_u32 s{sT3}, s{sROT}, {t*16384 + k*4096}")
        e(f"s_and_b32 s{sT3}, s{sT3}, 0x3ffff")
        vo = 251 if isV else 250
        sr = sV if isV else sK
        e(f"buffer_load_dwordx4 v{vo}, s[{sr}:{sr+3}], s{sT3} offen lds")
        vm.issue(('it', item))
HC = 20480
def issue_hc_l(j):
    sl = (j % 4) * HC
    for k in range(4):
        dma(vWQD, sWQ, (j*32 + k*8)*8192, sl + k*4096, ('hc', j))
    e(f"s_add_u32 m0, s{sW1024}, {sl + 16384}")
    e(f"s_mov_b32 s{sT3}, {j*64}")
    e(f"buffer_load_dwordx4 v{vXD}, s[{sX}:{sX+3}], s{sT3} offen lds")
    vm.issue(('hc', j))
def issue_hc(j):
    sl = (j % 4) * HC
    for k in range(2):
        dma(vWQD, sWQ, (j*32 + k*16)*8192, sl + k*8192, ('hc', j))
    e(f"s_and_b32 s{sT2}, s{sW1024}, 0xfff")
    e(f"s_add_u32 m0, s{sT2}, {sl + 16384}")
    e(f"s_mov_b32 s{sT3}, {j*64}")
    e(f"buffer_load_dwordx4 v{vXD}, s[{sX}:{sX+3}], s{sT3} offen lds")
    vm.issue(('hc', j))

WOSLOT = [0, 36864, 73728, 110592]
def issue_wo(j):
    sl = WOSLOT[j % 4]
    for k in range(5):
        if k < 4:
            dma(vWOD + k, sWO, j*16*1152, sl + k*8192, ('wo', j))
        else:
            e(f"s_and_b32 s{sT2}, s{sW1024}, 0xfff")
            e(f"s_add_u32 m0, s{sT2}, {sl + 32768}")
            e(f"s_mov_b32 s{sT3}, {j*16*1152}")
            e(f"buffer_load_dwordx4 v{vWOD+4}, s[{sWO}:{sWO+3}], s{sT3} offen lds")
            vm.issue(('wo', j))

def gen_attn():
    lab("attn_kernel")
    e("s_cmp_ge_u32 s2, 256")
    e("s_cbranch_scc1 L_attn_done")
    if os.environ.get("SWAPMAP") == "1":
        e("s_and_b32 s3, s2, 15")
        e("s_lshl_b32 s3, s3, 4")
        e("s_lshr_b32 s2, s2, 4")
        e("s_or_b32 s2, s2, s3")
    e("s_load_dwordx4 s[40:43], s[0:1], 0")
    e("s_load_dwordx4 s[44:47], s[0:1], 16")
    e("s_load_dwordx2 s[48:49], s[0:1], 32")
    e("s_load_dwordx2 s[50:51], s[0:1], 56")
    stamp()
    e(f"v_and_b32 v{vLANE}, 63, v0")
    e(f"v_lshrrev_b32 v{vT0}, 6, v0")
    e("s_nop 0")
    e(f"v_readfirstlane_b32 s{sW}, v{vT0}")
    e("s_nop 3")
    e(f"s_lshr_b32 s{sG}, s{sW}, 2")
    e(f"s_and_b32 s{sQI}, s{sW}, 3")
    e(f"s_lshl_b32 s{sW1024}, s{sW}, 10")
    e(f"s_lshr_b32 s{sHEAD}, s{sQI}, 1")
    e("s_waitcnt lgkmcnt(0)")
    e(f"s_lshl_b32 s{sT0}, s2, 18")
    e(f"s_lshr_b32 s{sT1}, s2, 14")
    e(f"s_add_u32 s42, s42, s{sT0}")
    e(f"s_addc_u32 s43, s43, s{sT1}")
    e(f"s_add_u32 s44, s44, s{sT0}")
    e(f"s_addc_u32 s45, s45, s{sT1}")
    srd(sK, 42, 43, 262144)
    srd(sV, 44, 45, 262144)
    e(f"s_and_b32 s{sT0}, s2, 15")
    e(f"s_lshl_b32 s{sT1}, s{sT0}, 9")
    e(f"s_add_u32 s46, s46, s{sT1}")
    e(f"s_addc_u32 s47, s47, 0")
    srd(sWQ, 46, 47, 0)
    e(f"s_sub_u32 s{sWQ+2}, {576*8192}, s{sT1}")
    e(f"s_lshr_b32 s{sT1}, s2, 4")
    e(f"s_mul_i32 s{sT2}, s{sT1}, 73728")
    e(f"s_add_u32 s40, s40, s{sT2}")
    e(f"s_addc_u32 s41, s41, 0")
    srd(sX, 40, 41, 73728)
    e(f"s_mul_i32 s{sT2}, s{sT0}, {256*1152}")
    e(f"s_add_u32 s48, s48, s{sT2}")
    e(f"s_addc_u32 s49, s49, 0")
    srd(sWO, 48, 49, 256*1152)
    e(f"s_mul_i32 s{sT2}, s2, 147456")
    e(f"s_add_u32 s50, s50, s{sT2}")
    e(f"s_addc_u32 s51, s51, 0")
    srd(sPT, 50, 51, 147456)
    e(f"s_and_b32 s{sQH}, s{sQI}, 1")
    e(f"s_lshr_b32 s{sROT}, s2, 3")
    e(f"s_and_b32 s{sROT}, s{sROT}, 15")
    e(f"s_lshl_b32 s{sROT}, s{sROT}, 14")
    e(f"s_mov_b32 s{sC}, 0x3e0293ee")
    e(f"v_lshrrev_b32 v{vH}, 5, v{vLANE}")
    e(f"v_and_b32 v{vR16}, 31, v{vLANE}")
    e(f"v_lshlrev_b32 v{vDUMP}, 4, v{vLANE}")
    e(f"s_mov_b32 s{sT1}, 3728271")
    e(f"s_movk_i32 s{sT2}, 1152")
    for k in range(9):
        e(f"s_add_u32 s{sT0}, s{sW1024}, {k*8192}")
        e(f"v_add_u32 v{vT0}, s{sT0}, v{vDUMP}")
        e(f"v_mul_hi_u32 v{vT1}, v{vT0}, s{sT1}")
        e(f"v_mul_lo_u32 v{vT2}, v{vT1}, s{sT2}")
        e(f"v_bfe_u32 v{vT3}, v{vT1}, 1, 3")
        e(f"v_lshlrev_b32 v{vT3}, 4, v{vT3}")
        e(f"v_xor_b32 v{vT0}, v{vT0}, v{vT3}")
        e(f"v_mov_b32 v{vXR+k}, v{vT0}")
    e(f"s_lshl_b32 s{sT0}, s{sQH}, 5")
    e(f"v_add_u32 v{vT0}, s{sT0}, v{vR16}")
    e(f"v_bfe_u32 v{vT1}, v{vT0}, 1, 3")
    e(f"v_mul_lo_u32 v{vT0}, v{vT0}, s{sT2}")
    for c4 in range(4):
        e(f"v_or_b32 v{vT2}, {2*c4}, v{vH}")
        e(f"v_xor_b32 v{vT2}, v{vT2}, v{vT1}")
        e(f"v_lshl_add_u32 v{vXA+c4}, v{vT2}, 4, v{vT0}")
    e(f"s_lshl_b32 s{sT0}, s{sW}, 1")
    e(f"v_add_u32 v{vT1}, s{sT0}, v{vH}")
    e(f"v_and_b32 v{vT2}, 3, v{vT1}")
    e(f"v_lshlrev_b32 v{vT2}, 2, v{vT2}")
    e(f"v_xor_b32 v{vT2}, v{vT2}, v{vR16}")
    e(f"v_lshlrev_b32 v{vT2}, 4, v{vT2}")
    e(f"v_lshl_add_u32 v{vWQD}, v{vT1}, 13, v{vT2}")
    e(f"v_lshrrev_b32 v{vT0}, 4, v{vLANE}")
    e(f"v_and_b32 v{vT1}, 15, v{vLANE}")
    e(f"s_lshl_b32 s{sT0}, s{sQI}, 2")
    e(f"v_add_u32 v{vT2}, s{sT0}, v{vT0}")
    e(f"v_xor_b32 v{vT2}, v{vT2}, v{vT1}")
    e(f"v_lshlrev_b32 v{vT2}, 4, v{vT2}")
    e(f"s_lshl_b32 s{sT0}, s{sW}, 2")
    e(f"v_add_u32 v{vT3}, s{sT0}, v{vT0}")
    e(f"v_lshl_add_u32 v{vKD}, v{vT3}, 8, v{vT2}")
    e(f"v_lshlrev_b32 v{vT2}, 2, v{vT0}")
    e(f"v_xor_b32 v{vT2}, v{vT2}, v{vT1}")
    e(f"v_lshlrev_b32 v{vT2}, 4, v{vT2}")
    e(f"v_lshl_add_u32 v{vVD}, v{vT3}, 8, v{vT2}")
    e(f"v_and_b32 v{vT0}, 15, v{vLANE}")
    for ks in range(8):
        e(f"v_or_b32 v{vT1}, {2*ks}, v{vH}")
        e(f"v_xor_b32 v{vT1}, v{vT1}, v{vT0}")
        e(f"v_lshlrev_b32 v{vT1}, 4, v{vT1}")
        e(f"v_lshl_add_u32 v{vKA+ks}, v{vR16}, 8, v{vT1}")
    e(f"v_bfe_u32 v{vT0}, v{vLANE}, 4, 1")
    e(f"v_bfe_u32 v{vT1}, v{vLANE}, 2, 2")
    e(f"v_and_b32 v{vT2}, 3, v{vLANE}")
    e(f"v_lshlrev_b32 v{vT3}, 5, v{vT0}")
    e(f"v_lshl_add_u32 v{vT3}, v{vT2}, 3, v{vT3}")
    e(f"v_lshl_add_u32 v{vT4}, v{vH}, 2, v{vT1}")
    e(f"v_lshl_add_u32 v{vT4}, v{vT4}, 8, v{vT3}")
    for dt in range(4):
        e(f"v_xor_b32 v{vT5}, {dt}, v{vT1}")
        e(f"v_lshl_add_u32 v{vVA+dt}, v{vT5}, 6, v{vT4}")
    e(f"v_lshl_add_u32 v{vT4}, v{vH}, 3, v{vT1}")
    e(f"v_lshl_add_u32 v{vT4}, v{vT4}, 9, v{vT3}")
    e(f"s_lshl_b32 s{sT0}, s{sHEAD}, 2")
    e(f"s_lshl_b32 s{sT1}, s{sG}, 1")
    e(f"s_add_u32 s{sT0}, s{sT0}, s{sT1}")
    for dt in range(2):
        e(f"s_add_u32 s{sT1}, s{sT0}, {dt}")
        e(f"v_xor_b32 v{vT5}, s{sT1}, v{vT1}")
        e(f"v_lshl_add_u32 v{vWQA+dt}, v{vT5}, 6, v{vT4}")
    e(f"s_lshl_b32 s{sT0}, s{sHEAD}, 4")
    e(f"v_lshl_add_u32 v{vT4}, v{vH}, 2, v{vT1}")
    e(f"v_add_u32 v{vT4}, s{sT0}, v{vT4}")
    e(f"s_movk_i32 s{sT1}, 1152")
    e(f"v_mul_lo_u32 v{vT4}, v{vT4}, s{sT1}")
    e(f"s_mul_i32 s{sT0}, s{sG}, 576")
    e(f"v_add3_u32 v{vWOA}, v{vT4}, s{sT0}, v{vT3}")
    for k in range(5):
        if k < 4:
            e(f"s_add_u32 s{sT0}, s{sW1024}, {k*8192}")
        else:
            e(f"s_and_b32 s{sT0}, s{sW1024}, 0xfff")
            e(f"s_add_u32 s{sT0}, s{sT0}, 32768")
        e(f"v_add_u32 v{vT0}, s{sT0}, v{vDUMP}")
        e(f"v_mov_b32 v{vT1}, 18432")
        e(f"v_cmp_ge_u32 vcc, v{vT0}, v{vT1}")
        e(f"v_mov_b32 v{vT2}, 129024")
        e("s_nop 1")
        e(f"v_cndmask_b32 v{vT2}, 0, v{vT2}, vcc")
        e(f"v_add_u32 v{vWOD+k}, v{vT0}, v{vT2}")
    e(f"s_lshl_b32 s{sT0}, s{sQI}, 13")
    e(f"s_add_u32 s{sT0}, s{sT0}, 81920")
    e(f"v_lshlrev_b32 v{vQW}, 8, v{vR16}")
    e(f"v_add_u32 v{vQW}, s{sT0}, v{vQW}")
    e(f"v_lshl_add_u32 v{vQW}, v{vH}, 3, v{vQW}")
    for k in range(9):
        e(f"s_add_u32 m0, s{sW1024}, {k*8192}")
        e(f"buffer_load_dwordx4 v{vXR+k}, s[{sX}:{sX+3}], 0 offen lds")
        vm.issue('x')
    vW = 56
    for j in range(18):
        for k in range(2):
            r = vW + 8*j + 4*k
            e(f"s_mov_b32 s{sT3}, {(j*32 + k*16)*8192}")
            e(f"buffer_load_dwordx4 v[{r}:{r+3}], v{vWQD}, s[{sWQ}:{sWQ+3}], s{sT3} offen")
            vm.issue(('w', j))
        if j == 5:
            for it_ in range(3): issue_item(it_)
    e(f"s_add_u32 s{sT0}, s{sW1024}, 73728")
    e(f"v_add_u32 v{vT4}, s{sT0}, v{vDUMP}")
    e(f"v_add_u32 v{vT0}, 73728, v{vWQA}")
    e(f"v_add_u32 v{vT1}, 73728, v{vWQA+1}")
    def wstore(j):
        vm.wait([('w', j)])
        for k in range(2):
            r = vW + 8*j + 4*k
            e(f"ds_write_b128 v{vT4}, v[{r}:{r+3}] offset:{(j%2)*16384 + k*8192}")
    wstore(0)
    for j in range(18):
        if j == 0: vm.wait(['x'])
        e("s_waitcnt lgkmcnt(0)")
        e("s_barrier")
        base = (j % 2) * 16384
        xb = 216
        for ks in range(2):
            cc = 2*j + ks
            e(f"ds_read_b128 v[{xb+4*ks}:{xb+4*ks+3}], v{vXA + cc%4} offset:{(cc//4)*128}")
        WA = [vT0, vT1]
        for n in range(4):
            ks, dt = divmod(n, 2)
            bb = vVB + 4*n
            e(f"ds_read_b64_tr_b16 v[{bb}:{bb+1}], v{WA[dt]} offset:{base + ks*8192}")
            e(f"ds_read_b64_tr_b16 v[{bb+2}:{bb+3}], v{WA[dt]} offset:{base + ks*8192 + 2048}")
        if j + 1 < 18: wstore(j + 1)
        nw = 2 if j + 1 < 18 else 0
        for n in range(4):
            ks, dt = divmod(n, 2)
            bb = vVB + 4*n
            e(f"s_waitcnt lgkmcnt({2*(3-n) + nw})")
            x = xb + 4*ks
            c = "0" if (j == 0 and ks == 0) else f"v[{vQ+16*dt}:{vQ+16*dt+15}]"
            e(f"v_mfma_f32_32x32x16_bf16 v[{vQ+16*dt}:{vQ+16*dt+15}], v[{bb}:{bb+3}], v[{x}:{x+3}], {c}")
    e("s_barrier")
    stamp()
    for it_ in range(3, 8): issue_item(it_)
    e("s_nop 7"); e("s_nop 7")
    e(f"v_and_b32 v{vT0}, 15, v{vLANE}")
    for dt in range(2):
        for i4 in range(4):
            a = vQ + 16*dt + 4*i4
            e(f"v_cvt_pk_bf16_f32 v{vT2}, v{a}, v{a+1}")
            e(f"v_cvt_pk_bf16_f32 v{vT3}, v{a+2}, v{a+3}")
            e(f"s_lshl_b32 s{sT0}, s{sG}, 3")
            e(f"s_add_u32 s{sT0}, s{sT0}, {dt*4 + i4}")
            e(f"v_xor_b32 v{vT4}, s{sT0}, v{vT0}")
            e(f"v_lshl_add_u32 v{vT4}, v{vT4}, 4, v{vQW}")
            e(f"ds_write_b64 v{vT4}, v[{vT2}:{vT3}]")
    e("s_waitcnt lgkmcnt(0)")
    e("s_barrier")
    e(f"s_lshl_b32 s{sT0}, s{sQI}, 13")
    e(f"s_add_u32 s{sT0}, s{sT0}, 81920")
    for ks in range(8):
        e(f"v_add_u32 v{vT0}, s{sT0}, v{vKA+ks}")
        e(f"ds_read_b128 v[{vQ+4*ks}:{vQ+4*ks+3}], v{vT0}")
    e(f"v_mov_b32 v{vM}, 0xff7fffff")
    e(f"v_mov_b32 v{vL}, 0")
    for i in range(64): e(f"v_mov_b32 v{vO+i}, 0")
    def sel(sreg, va, vb):
        e(f"s_mov_b32 s{sreg}, {vb}")
        e(f"s_cmp_eq_u32 s{sG}, 0")
        e(f"s_cselect_b32 s{sreg}, {va}, s{sreg}")
    sel(sDK, entry(0)*ENT, entry(1)*ENT)
    sel(sDV, entry(2)*ENT, entry(3)*ENT)
    for r in range(vKA, vKA+8): e(f"v_add_u32 v{r}, s{sDK}, v{r}")
    for r in range(vVA, vVA+4): e(f"v_add_u32 v{r}, s{sDV}, v{r}")
    e("s_waitcnt lgkmcnt(0)")
    for it in range(8):
        cm(f"---- iteration {it} ----")
        stamp()
        vm.wait([('it', 4*it), ('it', 4*it+1)])
        e("s_barrier")
        stamp()
        for item in (4*it+8, 4*it+9):
            if item < 32: issue_item(item)
        if it == 7: issue_wo(1)
        def kread(n):
            kvt, ks = divmod(n, 8)
            b = vKB + 4*(n % 8)
            e(f"ds_read_b128 v[{b}:{b+3}], v{vKA+ks} offset:{kvt*8192}")
        for n in range(8): kread(n)
        for n in range(16):
            kvt, ks = divmod(n, 8)
            b = vKB + 4*(n % 8)
            e(f"s_waitcnt lgkmcnt({min(7, 15-n)})")
            c = "0" if ks == 0 else f"v[{vS+16*kvt}:{vS+16*kvt+15}]"
            e(f"v_mfma_f32_32x32x16_bf16 v[{vS+16*kvt}:{vS+16*kvt+15}], v[{b}:{b+3}], v[{vQ+4*ks}:{vQ+4*ks+3}], {c}")
            if n + 8 < 16: kread(n + 8)
        pv = [(k4, dt) for k4 in range(4) for dt in range(4)]
        def vread(n):
            k4, dt = pv[n]
            b = vVB + 4*(n % 8)
            off = k4*16*256
            e(f"ds_read_b64_tr_b16 v[{b}:{b+1}], v{vVA+dt} offset:{off}")
            e(f"ds_read_b64_tr_b16 v[{b+2}:{b+3}], v{vVA+dt} offset:{off + 2048}")
        vm.wait([('it', 4*it+2), ('it', 4*it+3)])
        e("s_barrier")
        for item in (4*it+10, 4*it+11):
            if item < 32: issue_item(item)
        if it == 6: issue_wo(0)
        for n in range(6): vread(n)
        e("s_nop 7")
        e(f"v_max3_f32 v{vT0}, v{vS}, v{vS+1}, v{vS+2}")
        for i in range(3, 31, 2):
            e(f"v_max3_f32 v{vT0}, v{vT0}, v{vS+i}, v{vS+i+1}")
        e(f"v_max_f32 v{vT0}, v{vT0}, v{vS+31}")
        e(f"v_mov_b32 v{vT1}, v{vT0}")
        e("s_nop 1")
        e(f"v_permlane32_swap_b32 v{vT0}, v{vT1}")
        e(f"v_max_f32 v{vT0}, v{vT0}, v{vT1}")
        e(f"v_mul_f32 v{vT0}, s{sC}, v{vT0}")
        e(f"v_max_f32 v{vT0}, v{vT0}, v{vM}")
        e(f"v_sub_f32 v{vT1}, v{vM}, v{vT0}")
        e(f"v_exp_f32 v{vT1}, v{vT1}")
        e(f"v_mov_b32 v{vM}, v{vT0}")
        for i in range(32):
            e(f"v_fma_f32 v{vS+i}, v{vS+i}, s{sC}, -v{vT0}")
        for i in range(32):
            e(f"v_exp_f32 v{vS+i}, v{vS+i}")
        e(f"v_mul_f32 v{vL}, v{vL}, v{vT1}")
        for i in range(64):
            e(f"v_mul_f32 v{vO+i}, v{vO+i}, v{vT1}")
        for i in range(16):
            e(f"v_cvt_pk_bf16_f32 v{vP+i}, v{vS+2*i}, v{vS+2*i+1}")
        e(f"v_add_f32 v{vT2}, v{vS}, v{vS+1}")
        e(f"v_add_f32 v{vT3}, v{vS+2}, v{vS+3}")
        for i in range(4, 32, 2):
            e(f"v_add_f32 v{vT2}, v{vT2}, v{vS+i}")
            e(f"v_add_f32 v{vT3}, v{vT3}, v{vS+i+1}")
        e(f"v_add_f32 v{vL}, v{vL}, v{vT2}")
        e(f"v_add_f32 v{vL}, v{vL}, v{vT3}")
        for n in range(16):
            k4, dt = pv[n]
            b = vVB + 4*(n % 8)
            outstanding_after = 2*min(5, 15-n)
            e(f"s_waitcnt lgkmcnt({outstanding_after})")
            p = vP + 4*k4
            e(f"v_mfma_f32_32x32x16_bf16 v[{vO+16*dt}:{vO+16*dt+15}], v[{b}:{b+3}], v[{p}:{p+3}], v[{vO+16*dt}:{vO+16*dt+15}]")
            if n + 6 < 16: vread(n + 6)
        if it < 7:
            d = lambda x: (entry(x+4) - entry(x)) * ENT
            sel(sDK, d(4*it), d(4*it+1))
            sel(sDV, d(4*it+2), d(4*it+3))
            for r in range(vKA, vKA+8): e(f"v_add_u32 v{r}, s{sDK}, v{r}")
            for r in range(vVA, vVA+4): e(f"v_add_u32 v{r}, s{sDV}, v{r}")
    stamp()
    e("s_nop 7"); e("s_nop 7")
    e(f"v_mov_b32 v{vT1}, v{vL}")
    e("s_nop 1")
    e(f"v_permlane32_swap_b32 v{vL}, v{vT1}")
    e(f"v_add_f32 v{vL}, v{vL}, v{vT1}")
    e("s_barrier")
    e(f"s_lshl_b32 s{sT0}, s{sW}, 13")
    e(f"s_add_u32 s{sT0}, s{sT0}, 73728")
    e(f"v_add_u32 v{vT4}, s{sT0}, v{vDUMP}")
    e(f"s_xor_b32 s{sT0}, s{sT0}, 0")
    e(f"s_xor_b32 s{sT1}, s{sW}, 4")
    e(f"s_lshl_b32 s{sT0}, s{sT1}, 13")
    e(f"s_add_u32 s{sT0}, s{sT0}, 73728")
    e(f"v_add_u32 v{vT5}, s{sT0}, v{vDUMP}")
    e(f"s_lshl_b32 s{sT0}, s{sW}, 9")
    e(f"s_add_u32 s{sT0}, s{sT0}, 139264")
    e(f"v_lshl_add_u32 v{vT2}, v{vLANE}, 2, s{sT0}")
    e(f"s_lshl_b32 s{sT0}, s{sT1}, 9")
    e(f"s_add_u32 s{sT0}, s{sT0}, 139264")
    e(f"v_lshl_add_u32 v{vT3}, v{vLANE}, 2, s{sT0}")
    e(f"ds_write_b32 v{vT2}, v{vM}")
    e(f"ds_write_b32 v{vT2}, v{vL} offset:256")
    e(f"s_cmp_eq_u32 s{sG}, 0")
    e("s_cbranch_scc1 L_mergeA")
    def merge(keep, give):
        for i in range(8):
            e(f"ds_write_b128 v{vT4}, v[{give+4*i}:{give+4*i+3}] offset:{i*1024}")
        e("s_waitcnt lgkmcnt(0)")
        e("s_barrier")
        e(f"ds_read_b32 v{vT0}, v{vT3}")
        e(f"ds_read_b32 v{vT1}, v{vT3} offset:256")
        for i in range(8):
            e(f"ds_read_b128 v[{vS+4*i}:{vS+4*i+3}], v{vT5} offset:{i*1024}")
        e("s_waitcnt lgkmcnt(8)")
        e(f"v_max_f32 v{vT2}, v{vM}, v{vT0}")
        e(f"v_sub_f32 v{vM}, v{vM}, v{vT2}")
        e(f"v_sub_f32 v{vT0}, v{vT0}, v{vT2}")
        e(f"v_exp_f32 v{vM}, v{vM}")
        e(f"v_exp_f32 v{vT0}, v{vT0}")
        e("s_nop 0")
        e(f"v_mul_f32 v{vL}, v{vL}, v{vM}")
        e(f"v_fma_f32 v{vL}, v{vT1}, v{vT0}, v{vL}")
        e(f"v_rcp_f32 v{vL}, v{vL}")
        e("s_nop 0")
        e(f"v_mul_f32 v{vM}, v{vM}, v{vL}")
        e(f"v_mul_f32 v{vT0}, v{vT0}, v{vL}")
        e("s_waitcnt lgkmcnt(0)")
        for i in range(32):
            o = keep + i
            e(f"v_mul_f32 v{o}, v{o}, v{vM}")
            e(f"v_fma_f32 v{o}, v{vS+i}, v{vT0}, v{o}")
        pk = vQ + (0 if keep == vO else 16)
        other = vQ + (16 if keep == vO else 0)
        for i in range(16):
            e(f"v_cvt_pk_bf16_f32 v{pk+i}, v{keep+2*i}, v{keep+2*i+1}")
        for i in range(4):
            e(f"ds_write_b128 v{vT5}, v[{pk+4*i}:{pk+4*i+3}] offset:{i*1024}")
        e("s_waitcnt lgkmcnt(0)")
        e("s_barrier")
        for i in range(4):
            e(f"ds_read_b128 v[{other+4*i}:{other+4*i+3}], v{vT4} offset:{i*1024}")
        e("s_waitcnt lgkmcnt(0)")
    merge(vO+32, vO)
    e("s_branch L_mergeDone")
    lab("L_mergeA")
    merge(vO, vO+32)
    lab("L_mergeDone")
    e("s_barrier")
    issue_wo(2); issue_wo(3)
    stamp()
    for j in range(8):
        vm.wait([('wo', j)])
        e("s_barrier")
        if j >= 1 and j + 3 < 8: issue_wo(j + 3)
        base = WOSLOT[j % 4]
        e(f"v_add_u32 v{vT0}, {base}, v{vWOA}")
        def wread(n):
            b = vVB + 4*(n % 8)
            e(f"ds_read_b64_tr_b16 v[{b}:{b+1}], v{vT0} offset:{n*64}")
            e(f"ds_read_b64_tr_b16 v[{b+2}:{b+3}], v{vT0} offset:{n*64 + 8*1152}")
        for n in range(7): wread(n)
        for n in range(9):
            b = vVB + 4*(n % 8)
            e(f"s_waitcnt lgkmcnt({2*min(6, 8-n)})")
            c = "0" if j == 0 else f"v[{vACC+16*n}:{vACC+16*n+15}]"
            e(f"v_mfma_f32_32x32x16_bf16 v[{vACC+16*n}:{vACC+16*n+15}], v[{b}:{b+3}], v[{vQ+4*j}:{vQ+4*j+3}], {c}")
            if n + 7 < 9: wread(n + 7)
    e("s_nop 7"); e("s_nop 7")
    e("s_barrier")
    stamp()
    e(f"s_lshl_b32 s{sT0}, s{sQH}, 5")
    e(f"v_add_u32 v{vST}, s{sT0}, v{vR16}")
    e(f"s_movk_i32 s{sT1}, 2320")
    e(f"v_mul_lo_u32 v{vST}, v{vST}, s{sT1}")
    e(f"v_lshl_add_u32 v{vST}, v{vH}, 4, v{vST}")
    e(f"s_mul_i32 s{sT0}, s{sG}, 1152")
    e(f"v_add_u32 v{vST}, s{sT0}, v{vST}")
    e(f"s_cmp_eq_u32 s{sHEAD}, 0")
    e("s_cbranch_scc1 L_head0")
    for i in range(36):
        nt, i4 = divmod(i, 4)
        e(f"ds_write_b128 v{vST}, v[{vACC+4*i}:{vACC+4*i+3}] offset:{nt*128 + i4*32}")
    e("s_waitcnt lgkmcnt(0)")
    e("s_barrier")
    e("s_branch L_headdone")
    lab("L_head0")
    e("s_barrier")
    for i0 in range(0, 36, 6):
        for i in range(i0, i0+6):
            bb = vVB + 4*(i - i0)
            nt, i4 = divmod(i, 4)
            e(f"ds_read_b128 v[{bb}:{bb+3}], v{vST} offset:{nt*128 + i4*32}")
        for i in range(i0, i0+6):
            bb = vVB + 4*(i - i0)
            nt, i4 = divmod(i, 4)
            e(f"s_waitcnt lgkmcnt({5 - (i - i0)})")
            for k in range(4):
                e(f"v_add_f32 v{vACC+4*i+k}, v{vACC+4*i+k}, v{bb+k}")
        for i in range(i0, i0+6):
            nt, i4 = divmod(i, 4)
            e(f"ds_write_b128 v{vST}, v[{vACC+4*i}:{vACC+4*i+3}] offset:{nt*128 + i4*32}")
    e("s_waitcnt lgkmcnt(0)")
    lab("L_headdone")
    e("s_barrier")
    e(f"s_mul_i32 s{sT0}, s{sW}, {8*2320}")
    e(f"v_add_u32 v{vT0}, s{sT0}, v{vDUMP}")
    e(f"s_mul_i32 s{sT1}, s{sW}, {8*2304}")
    for r in range(8):
        for k in range(2):
            bb = vO + 8*r + 4*k
            e(f"ds_read_b128 v[{bb}:{bb+3}], v{vT0} offset:{r*2320 + k*1024}")
    e(f"v_cmp_gt_u32 vcc, 16, v{vLANE}")
    for r in range(8):
        e(f"s_waitcnt lgkmcnt({14 - 2*r})")
        e(f"s_add_u32 s{sT2}, s{sT1}, {r*2304}")
        for k in range(2):
            bb = vO + 8*r + 4*k
            e(f"buffer_store_dwordx4 v[{bb}:{bb+3}], v{vDUMP}, s[{sPT}:{sPT+3}], s{sT2} offen offset:{k*1024}")
    e("s_and_saveexec_b64 s[44:45], vcc")
    for r in range(8):
        bb = vS + 4*r
        e(f"ds_read_b128 v[{bb}:{bb+3}], v{vT0} offset:{r*2320 + 2048}")
    for r in range(8):
        bb = vS + 4*r
        e(f"s_waitcnt lgkmcnt({7 - r})")
        e(f"s_add_u32 s{sT2}, s{sT1}, {r*2304}")
        e(f"buffer_store_dwordx4 v[{bb}:{bb+3}], v{vDUMP}, s[{sPT}:{sPT+3}], s{sT2} offen offset:2048")
    e("s_mov_b64 exec, s[44:45]")
    stamp()
    e("s_waitcnt vmcnt(0)")
    stamp()
    stamp_flush()
    lab("L_attn_done")
    e("s_endpgm")

def gen_reduce():
    lab("red_kernel")
    e("s_cmp_ge_u32 s2, 288")
    e("s_cbranch_scc1 L_red_done")
    e("s_load_dwordx2 s[4:5], s[0:1], 56")
    e("s_load_dwordx2 s[6:7], s[0:1], 40")
    e("s_mov_b32 s8, 0xe38e38f")
    e("s_mul_hi_u32 s9, s2, s8")
    e("s_mul_i32 s10, s9, 18")
    e("s_sub_u32 s10, s2, s10")
    e("s_lshl_b32 s10, s10, 8")
    e("v_add_u32 v1, s10, v0")
    e("v_lshlrev_b32 v2, 5, v1")
    e("v_lshlrev_b32 v3, 4, v1")
    e("s_waitcnt lgkmcnt(0)")
    e("s_mul_i32 s11, s9, 2359296")
    e("s_add_u32 s4, s4, s11")
    e("s_addc_u32 s5, s5, 0")
    e("s_mov_b32 s12, s4"); e("s_and_b32 s13, s5, 0xffff"); e("s_mov_b32 s14, 2359296"); e("s_mov_b32 s15, 0x00020000")
    e("s_mul_i32 s11, s9, 73728")
    e("s_add_u32 s6, s6, s11")
    e("s_addc_u32 s7, s7, 0")
    e("s_mov_b32 s16, s6"); e("s_and_b32 s17, s7, 0xffff"); e("s_mov_b32 s18, 73728"); e("s_mov_b32 s19, 0x00020000")
    for h in range(16):
        e(f"s_mov_b32 s20, {h*147456}")
        e(f"buffer_load_dwordx4 v[{8+8*h}:{8+8*h+3}], v2, s[12:15], s20 offen")
        e(f"buffer_load_dwordx4 v[{12+8*h}:{12+8*h+3}], v2, s[12:15], s20 offen offset:16")
    for h in range(1, 16):
        e(f"s_waitcnt vmcnt({2*(15-h)})")
        for k in range(8):
            e(f"v_add_f32 v{8+k}, v{8+k}, v{8+8*h+k}")
    for k in range(4):
        e(f"v_cvt_pk_bf16_f32 v{4+k}, v{8+2*k}, v{9+2*k}")
    e("buffer_store_dwordx4 v[4:7], v3, s[16:19], 0 offen")
    lab("L_red_done")
    e("s_endpgm")

HDR = """; Fused GQA attention: kernel 1 = Qproj + attention + out-proj partials, kernel 2 = reduce
; @launch kernel=attn_kernel grid=(256,1,1) block=(512,1,1) lds=163840
; @launch kernel=red_kernel grid=(288,1,1) block=(256,1,1) lds=0
.amdgcn_target "amdgcn-amd-amdhsa--gfx950"
.text
"""
def kd(name, nv):
    return f""".amdhsa_kernel {name}
  .amdhsa_next_free_vgpr {nv}
  .amdhsa_next_free_sgpr 100
  .amdhsa_accum_offset {nv}
  .amdhsa_group_segment_fixed_size 0
  .amdhsa_kernarg_size 64
  .amdhsa_user_sgpr_count 2
  .amdhsa_user_sgpr_kernarg_segment_ptr 1
  .amdhsa_system_sgpr_workgroup_id_x 1
.end_amdhsa_kernel
"""
out = [HDR]
for name, g in (("attn_kernel", gen_attn), ("red_kernel", gen_reduce)):
    L.clear()
    out.append(f".globl {name}\n.p2align 8\n.type {name},@function\n")
    g()
    out.append("\n".join(L) + "\n")
out.append('.section .rodata,"a"\n.p2align 6\n')
out.append(kd("attn_kernel", 256))
out.append(".p2align 6\n")
out.append(kd("red_kernel", 136))
open(sys.argv[1] if len(sys.argv) > 1 else "standalone__gqa_block_cached__near_ridge.s", "w").write("".join(out))
```

```python
import sys

L = []
def e(s): L.append("    " + s)
def lab(s): L.append(s + ":")
def cm(s): L.append("    ; " + s)

class VM:
    def __init__(self): self.q = []
    def issue(self, tag): self.q.append(tag)
    def wait(self, tags):
        last = -1
        for i, t in enumerate(self.q):
            if t in tags: last = i
        if last < 0: return
        n = len(self.q) - 1 - last
        assert n <= 63
        e(f"s_waitcnt vmcnt({n})")
        self.q = self.q[last+1:]
vm = VM()
import os
STAMP = os.environ.get("STAMP") == "1"
nst = [0]
def stamp():
    if not STAMP: return
    i = nst[0]; nst[0] += 1
    e("s_memtime s[60:61]")
    e("s_waitcnt lgkmcnt(0)")
    e(f"s_mov_b32 s{64+i}, s60")
def stamp_flush():
    if not STAMP: return
    e("s_cmp_lg_u32 s2, 37")
    e("s_cbranch_scc1 L_nostamp")
    e(f"s_cmp_lg_u32 s{sW}, 0")
    e("s_cbranch_scc1 L_nostamp")
    e("s_load_dwordx2 s[60:61], s[0:1], 48")
    e("s_waitcnt lgkmcnt(0)")
    e("s_mov_b32 s56, s60"); e("s_and_b32 s57, s61, 0xffff"); e("s_mov_b32 s58, 256"); e("s_mov_b32 s59, 0x00020000")
    e("v_mov_b32 v2, 0")
    for i in range(nst[0]):
        e(f"s_sub_u32 s62, s{64+i}, s64")
        e("v_mov_b32 v3, s62")
        e(f"buffer_store_dword v3, v2, s[56:59], 0 offen offset:{4*i}")
    e("s_waitcnt vmcnt(0)")
    lab("L_nostamp")

vLANE = 1
vKA = 2
vVA = 10
vKD = 14
vVD = 15
vM = 16; vL = 17
vT0 = 18; vT1 = 19; vT2 = 20; vT3 = 21; vT4 = 22; vT5 = 23
vQ = 24
vO = 56
vS = 120
vP = 152
vKB = 168
vVB = 200
vX = 56
vWQD = 232
vWQA = 233
vWOD = 236
vWOA = 241
vQW = 242
vDUMP = 243
vST = 244
vH = 245
vR16 = 246
vACC = 56

sK, sV, sWQ, sX, sWO, sPT = 4, 8, 12, 16, 20, 24
sW = 28; sG = 29; sQI = 30; sW1024 = 31
sT0 = 32; sT1 = 33; sT2 = 34; sT3 = 35
sC = 36
sSLOT = 37
sDELTA = 38
sHEAD = 39; sQH = 40

SLOT = 32768
def slot_of(t): return (t + 3) % 5

def srd(s, base_lo, base_hi, nbytes):
    e(f"s_mov_b32 s{s}, s{base_lo}")
    e(f"s_and_b32 s{s+1}, s{base_hi}, 0xffff")
    e(f"s_mov_b32 s{s+2}, {nbytes}")
    e(f"s_mov_b32 s{s+3}, 0x00020000")

def dma(voff, srdreg, soff_expr, m0_const, tag):
    e(f"s_add_u32 m0, s{sW1024}, {m0_const}")
    e(f"s_mov_b32 s{sT3}, {soff_expr}")
    e(f"buffer_load_dwordx4 v{voff}, s[{srdreg}:{srdreg+3}], s{sT3} offen lds")
    vm.issue(tag)

sROT = 41
sDK = 42; sDV = 43
vXA = 247; vXR = 251
ENT = 16384
def entry(item): return (item + 8) % 10
def issue_item(item):
    i, r = divmod(item, 4)
    t = 2*i + (r & 1)
    isV = r >= 2
    sl = entry(item) * ENT
    for k in range(2):
        e(f"s_add_u32 m0, s{sW1024}, {sl + k*8192}")
        e(f"s_add_u32 s{sT3}, s{sROT}, {t*16384 + k*8192}")
        e(f"s_and_b32 s{sT3}, s{sT3}, 0x3ffff")
        vo = vVD if isV else vKD
        sr = sV if isV else sK
        e(f"buffer_load_dwordx4 v{vo}, s[{sr}:{sr+3}], s{sT3} offen lds")
        vm.issue(('it', item))

def issue_item_p(item):
    i, r = divmod(item, 4)
    t = 2*i + (r & 1)
    isV = r >= 2
    sl = entry(item) * ENT
    for k in range(4):
        e(f"s_add_u32 m0, s{sW1024}, {sl + k*4096 - 4096}")
        e(f"s_add_u32 s{sT3}, s{sROT}, {t*16384 + k*4096}")
        e(f"s_and_b32 s{sT3}, s{sT3}, 0x3ffff")
        vo = 251 if isV else 250
        sr = sV if isV else sK
        e(f"buffer_load_dwordx4 v{vo}, s[{sr}:{sr+3}], s{sT3} offen lds")
        vm.issue(('it', item))
HC = 20480
def issue_hc_l(j):
    sl = (j % 4) * HC
    for k in range(4):
        dma(vWQD, sWQ, (j*32 + k*8)*8192, sl + k*4096, ('hc', j))
    e(f"s_add_u32 m0, s{sW1024}, {sl + 16384}")
    e(f"s_mov_b32 s{sT3}, {j*64}")
    e(f"buffer_load_dwordx4 v{vXD}, s[{sX}:{sX+3}], s{sT3} offen lds")
    vm.issue(('hc', j))
def issue_hc(j):
    sl = (j % 4) * HC
    for k in range(2):
        dma(vWQD, sWQ, (j*32 + k*16)*8192, sl + k*8192, ('hc', j))
    e(f"s_and_b32 s{sT2}, s{sW1024}, 0xfff")
    e(f"s_add_u32 m0, s{sT2}, {sl + 16384}")
    e(f"s_mov_b32 s{sT3}, {j*64}")
    e(f"buffer_load_dwordx4 v{vXD}, s[{sX}:{sX+3}], s{sT3} offen lds")
    vm.issue(('hc', j))

WOSLOT = [0, 36864, 73728, 110592]
def issue_wo(j):
    sl = WOSLOT[j % 4]
    for k in range(5):
        if k < 4:
            dma(vWOD + k, sWO, j*16*1152, sl + k*8192, ('wo', j))
        else:
            e(f"s_and_b32 s{sT2}, s{sW1024}, 0xfff")
            e(f"s_add_u32 m0, s{sT2}, {sl + 32768}")
            e(f"s_mov_b32 s{sT3}, {j*16*1152}")
            e(f"buffer_load_dwordx4 v{vWOD+4}, s[{sWO}:{sWO+3}], s{sT3} offen lds")
            vm.issue(('wo', j))

def gen_attn():
    lab("attn_kernel")
    e("s_cmp_ge_u32 s2, 256")
    e("s_cbranch_scc1 L_attn_done")
    if os.environ.get("SWAPMAP") == "1":
        e("s_and_b32 s3, s2, 15")
        e("s_lshl_b32 s3, s3, 4")
        e("s_lshr_b32 s2, s2, 4")
        e("s_or_b32 s2, s2, s3")
    e("s_load_dwordx4 s[40:43], s[0:1], 0")
    e("s_load_dwordx4 s[44:47], s[0:1], 16")
    e("s_load_dwordx2 s[48:49], s[0:1], 32")
    e("s_load_dwordx2 s[50:51], s[0:1], 56")
    stamp()
    e(f"v_and_b32 v{vLANE}, 63, v0")
    e(f"v_lshrrev_b32 v{vT0}, 6, v0")
    e("s_nop 0")
    e(f"v_readfirstlane_b32 s{sW}, v{vT0}")
    e("s_nop 3")
    e(f"s_lshr_b32 s{sG}, s{sW}, 2")
    e(f"s_and_b32 s{sQI}, s{sW}, 3")
    e(f"s_lshl_b32 s{sW1024}, s{sW}, 10")
    e(f"s_lshr_b32 s{sHEAD}, s{sQI}, 1")
    e("s_waitcnt lgkmcnt(0)")
    e(f"s_lshl_b32 s{sT0}, s2, 18")
    e(f"s_lshr_b32 s{sT1}, s2, 14")
    e(f"s_add_u32 s42, s42, s{sT0}")
    e(f"s_addc_u32 s43, s43, s{sT1}")
    e(f"s_add_u32 s44, s44, s{sT0}")
    e(f"s_addc_u32 s45, s45, s{sT1}")
    srd(sK, 42, 43, 262144)
    srd(sV, 44, 45, 262144)
    e(f"s_and_b32 s{sT0}, s2, 15")
    e(f"s_lshl_b32 s{sT1}, s{sT0}, 9")
    e(f"s_add_u32 s46, s46, s{sT1}")
    e(f"s_addc_u32 s47, s47, 0")
    srd(sWQ, 46, 47, 0)
    e(f"s_sub_u32 s{sWQ+2}, {576*8192}, s{sT1}")
    e(f"s_lshr_b32 s{sT1}, s2, 4")
    e(f"s_mul_i32 s{sT2}, s{sT1}, 73728")
    e(f"s_add_u32 s40, s40, s{sT2}")
    e(f"s_addc_u32 s41, s41, 0")
    srd(sX, 40, 41, 73728)
    e(f"s_mul_i32 s{sT2}, s{sT0}, {256*1152}")
    e(f"s_add_u32 s48, s48, s{sT2}")
    e(f"s_addc_u32 s49, s49, 0")
    srd(sWO, 48, 49, 256*1152)
    e(f"s_mul_i32 s{sT2}, s2, 147456")
    e(f"s_add_u32 s50, s50, s{sT2}")
    e(f"s_addc_u32 s51, s51, 0")
    srd(sPT, 50, 51, 147456)
    e(f"s_and_b32 s{sQH}, s{sQI}, 1")
    e(f"s_lshr_b32 s{sROT}, s2, 3")
    e(f"s_and_b32 s{sROT}, s{sROT}, 15")
    e(f"s_lshl_b32 s{sROT}, s{sROT}, 14")
    e(f"s_mov_b32 s{sC}, 0x3e0293ee")
    e(f"v_lshrrev_b32 v{vH}, 5, v{vLANE}")
    e(f"v_and_b32 v{vR16}, 31, v{vLANE}")
    e(f"v_lshlrev_b32 v{vDUMP}, 4, v{vLANE}")
    e(f"v_lshrrev_b32 v{vT0}, 3, v{vLANE}")
    e(f"s_lshl_b32 s{sT0}, s{sW}, 3")
    e(f"v_add_u32 v{vT0}, s{sT0}, v{vT0}")
    e(f"v_bfe_u32 v{vT1}, v{vT0}, 1, 3")
    e(f"s_movk_i32 s{sT2}, 1152")
    e(f"v_mul_lo_u32 v{vT0}, v{vT0}, s{sT2}")
    e(f"v_and_b32 v{vT2}, 7, v{vLANE}")
    e(f"v_xor_b32 v{vT1}, v{vT1}, v{vT2}")
    e(f"v_lshl_add_u32 v{vXR}, v{vT1}, 4, v{vT0}")
    e(f"s_lshl_b32 s{sT0}, s{sQH}, 5")
    e(f"v_add_u32 v{vT0}, s{sT0}, v{vR16}")
    e(f"v_bfe_u32 v{vT1}, v{vT0}, 1, 3")
    e(f"v_lshlrev_b32 v{vT0}, 7, v{vT0}")
    e(f"v_add_u32 v{vT0}, 32768, v{vT0}")
    for c4 in range(4):
        e(f"v_or_b32 v{vT2}, {2*c4}, v{vH}")
        e(f"v_xor_b32 v{vT2}, v{vT2}, v{vT1}")
        e(f"v_lshl_add_u32 v{vXA+c4}, v{vT2}, 4, v{vT0}")
    e(f"s_lshl_b32 s{sT0}, s{sW}, 1")
    e(f"v_add_u32 v{vT1}, s{sT0}, v{vH}")
    e(f"v_and_b32 v{vT2}, 3, v{vT1}")
    e(f"v_lshlrev_b32 v{vT2}, 2, v{vT2}")
    e(f"v_xor_b32 v{vT2}, v{vT2}, v{vR16}")
    e(f"v_lshlrev_b32 v{vT2}, 4, v{vT2}")
    e(f"v_lshl_add_u32 v{vWQD}, v{vT1}, 13, v{vT2}")
    e(f"v_lshrrev_b32 v{vT0}, 4, v{vLANE}")
    e(f"v_and_b32 v{vT1}, 15, v{vLANE}")
    e(f"s_lshl_b32 s{sT0}, s{sQI}, 2")
    e(f"v_add_u32 v{vT2}, s{sT0}, v{vT0}")
    e(f"v_xor_b32 v{vT2}, v{vT2}, v{vT1}")
    e(f"v_lshlrev_b32 v{vT2}, 4, v{vT2}")
    e(f"s_lshl_b32 s{sT0}, s{sW}, 2")
    e(f"v_add_u32 v{vT3}, s{sT0}, v{vT0}")
    e(f"v_lshl_add_u32 v{vKD}, v{vT3}, 8, v{vT2}")
    e(f"v_lshlrev_b32 v{vT2}, 2, v{vT0}")
    e(f"v_xor_b32 v{vT2}, v{vT2}, v{vT1}")
    e(f"v_lshlrev_b32 v{vT2}, 4, v{vT2}")
    e(f"v_lshl_add_u32 v{vVD}, v{vT3}, 8, v{vT2}")
    e(f"v_and_b32 v{vT0}, 15, v{vLANE}")
    for ks in range(8):
        e(f"v_or_b32 v{vT1}, {2*ks}, v{vH}")
        e(f"v_xor_b32 v{vT1}, v{vT1}, v{vT0}")
        e(f"v_lshlrev_b32 v{vT1}, 4, v{vT1}")
        e(f"v_lshl_add_u32 v{vKA+ks}, v{vR16}, 8, v{vT1}")
    e(f"v_bfe_u32 v{vT0}, v{vLANE}, 4, 1")
    e(f"v_bfe_u32 v{vT1}, v{vLANE}, 2, 2")
    e(f"v_and_b32 v{vT2}, 3, v{vLANE}")
    e(f"v_lshlrev_b32 v{vT3}, 5, v{vT0}")
    e(f"v_lshl_add_u32 v{vT3}, v{vT2}, 3, v{vT3}")
    e(f"v_lshl_add_u32 v{vT4}, v{vH}, 2, v{vT1}")
    e(f"v_lshl_add_u32 v{vT4}, v{vT4}, 8, v{vT3}")
    for dt in range(4):
        e(f"v_xor_b32 v{vT5}, {dt}, v{vT1}")
        e(f"v_lshl_add_u32 v{vVA+dt}, v{vT5}, 6, v{vT4}")
    e(f"v_lshl_add_u32 v{vT4}, v{vH}, 3, v{vT1}")
    e(f"v_lshl_add_u32 v{vT4}, v{vT4}, 9, v{vT3}")
    e(f"s_lshl_b32 s{sT0}, s{sHEAD}, 2")
    e(f"s_lshl_b32 s{sT1}, s{sG}, 1")
    e(f"s_add_u32 s{sT0}, s{sT0}, s{sT1}")
    for dt in range(2):
        e(f"s_add_u32 s{sT1}, s{sT0}, {dt}")
        e(f"v_xor_b32 v{vT5}, s{sT1}, v{vT1}")
        e(f"v_lshl_add_u32 v{vWQA+dt}, v{vT5}, 6, v{vT4}")
    e(f"s_lshl_b32 s{sT0}, s{sHEAD}, 4")
    e(f"v_lshl_add_u32 v{vT4}, v{vH}, 2, v{vT1}")
    e(f"v_add_u32 v{vT4}, s{sT0}, v{vT4}")
    e(f"s_movk_i32 s{sT1}, 1152")
    e(f"v_mul_lo_u32 v{vT4}, v{vT4}, s{sT1}")
    e(f"s_mul_i32 s{sT0}, s{sG}, 576")
    e(f"v_add3_u32 v{vWOA}, v{vT4}, s{sT0}, v{vT3}")
    for k in range(5):
        if k < 4:
            e(f"s_add_u32 s{sT0}, s{sW1024}, {k*8192}")
        else:
            e(f"s_and_b32 s{sT0}, s{sW1024}, 0xfff")
            e(f"s_add_u32 s{sT0}, s{sT0}, 32768")
        e(f"v_add_u32 v{vT0}, s{sT0}, v{vDUMP}")
        e(f"v_mov_b32 v{vT1}, 18432")
        e(f"v_cmp_ge_u32 vcc, v{vT0}, v{vT1}")
        e(f"v_mov_b32 v{vT2}, 129024")
        e("s_nop 1")
        e(f"v_cndmask_b32 v{vT2}, 0, v{vT2}, vcc")
        e(f"v_add_u32 v{vWOD+k}, v{vT0}, v{vT2}")
    e(f"s_lshl_b32 s{sT0}, s{sQI}, 13")
    e(f"s_add_u32 s{sT0}, s{sT0}, 98304")
    e(f"v_lshlrev_b32 v{vQW}, 8, v{vR16}")
    e(f"v_add_u32 v{vQW}, s{sT0}, v{vQW}")
    e(f"v_lshl_add_u32 v{vQW}, v{vH}, 3, v{vQW}")
    CH = 40960
    def issue_ch(j):
        sl = (j % 3) * CH
        for k in range(4):
            dma(vWQD, sWQ, (j*64 + k*16)*8192, sl + k*8192, ('ch', j))
        dma(vXR, sX, j*128, sl + 32768, ('ch', j))
    issue_ch(0); issue_ch(1)
    issue_item(0); issue_item(1)
    for j in range(9):
        vm.wait([('ch', j)])
        e("s_barrier")
        if j % 3 == 0: stamp()
        if j + 2 < 9: issue_ch(j + 2)
        base = (j % 3) * CH
        e(f"v_add_u32 v{vT0}, {base}, v{vWQA}")
        e(f"v_add_u32 v{vT1}, {base}, v{vWQA+1}")
        xb = vKB
        for ks in range(4):
            e(f"v_add_u32 v{vT2+ks}, {base}, v{vXA+ks}")
        for ks in range(4):
            e(f"ds_read_b128 v[{xb+4*ks}:{xb+4*ks+3}], v{vT2+ks}")
        WA = [vT0, vT1]
        for n in range(8):
            ks, dt = divmod(n, 2)
            bb = vVB + 4*n
            if n == 5: e("s_waitcnt lgkmcnt(6)")
            e(f"ds_read_b64_tr_b16 v[{bb}:{bb+1}], v{WA[dt]} offset:{ks*8192}")
            e(f"ds_read_b64_tr_b16 v[{bb+2}:{bb+3}], v{WA[dt]} offset:{ks*8192 + 2048}")
        for n in range(8):
            ks, dt = divmod(n, 2)
            bb = vVB + 4*n
            e(f"s_waitcnt lgkmcnt({min(15, 2*(7-n))})")
            x = xb + 4*ks
            c = "0" if (j == 0 and ks == 0) else f"v[{vQ+16*dt}:{vQ+16*dt+15}]"
            e(f"v_mfma_f32_32x32x16_bf16 v[{vQ+16*dt}:{vQ+16*dt+15}], v[{bb}:{bb+3}], v[{x}:{x+3}], {c}")
    e("s_barrier")
    stamp()
    for it_ in range(2, 8): issue_item(it_)
    e("s_nop 7"); e("s_nop 7")
    e(f"v_and_b32 v{vT0}, 15, v{vLANE}")
    for dt in range(2):
        for i4 in range(4):
            a = vQ + 16*dt + 4*i4
            e(f"v_cvt_pk_bf16_f32 v{vT2}, v{a}, v{a+1}")
            e(f"v_cvt_pk_bf16_f32 v{vT3}, v{a+2}, v{a+3}")
            e(f"s_lshl_b32 s{sT0}, s{sG}, 3")
            e(f"s_add_u32 s{sT0}, s{sT0}, {dt*4 + i4}")
            e(f"v_xor_b32 v{vT4}, s{sT0}, v{vT0}")
            e(f"v_lshl_add_u32 v{vT4}, v{vT4}, 4, v{vQW}")
            e(f"ds_write_b64 v{vT4}, v[{vT2}:{vT3}]")
    e("s_waitcnt lgkmcnt(0)")
    e("s_barrier")
    e(f"s_lshl_b32 s{sT0}, s{sQI}, 13")
    e(f"s_add_u32 s{sT0}, s{sT0}, 98304")
    for ks in range(8):
        e(f"v_add_u32 v{vT0}, s{sT0}, v{vKA+ks}")
        e(f"ds_read_b128 v[{vQ+4*ks}:{vQ+4*ks+3}], v{vT0}")
    e(f"v_mov_b32 v{vM}, 0xff7fffff")
    e(f"v_mov_b32 v{vL}, 0")
    for i in range(64): e(f"v_mov_b32 v{vO+i}, 0")
    def sel(sreg, va, vb):
        e(f"s_mov_b32 s{sreg}, {vb}")
        e(f"s_cmp_eq_u32 s{sG}, 0")
        e(f"s_cselect_b32 s{sreg}, {va}, s{sreg}")
    sel(sDK, entry(0)*ENT, entry(1)*ENT)
    sel(sDV, entry(2)*ENT, entry(3)*ENT)
    for r in range(vKA, vKA+8): e(f"v_add_u32 v{r}, s{sDK}, v{r}")
    for r in range(vVA, vVA+4): e(f"v_add_u32 v{r}, s{sDV}, v{r}")
    e("s_waitcnt lgkmcnt(0)")
    for it in range(8):
        cm(f"---- iteration {it} ----")
        stamp()
        vm.wait([('it', 4*it), ('it', 4*it+1)])
        e("s_barrier")
        stamp()
        for item in (4*it+8, 4*it+9):
            if item < 32: issue_item(item)
        if it == 7: issue_wo(1)
        def kread(n):
            kvt, ks = divmod(n, 8)
            b = vKB + 4*(n % 8)
            e(f"ds_read_b128 v[{b}:{b+3}], v{vKA+ks} offset:{kvt*8192}")
        for n in range(8): kread(n)
        for n in range(16):
            kvt, ks = divmod(n, 8)
            b = vKB + 4*(n % 8)
            e(f"s_waitcnt lgkmcnt({min(7, 15-n)})")
            c = "0" if ks == 0 else f"v[{vS+16*kvt}:{vS+16*kvt+15}]"
            e(f"v_mfma_f32_32x32x16_bf16 v[{vS+16*kvt}:{vS+16*kvt+15}], v[{b}:{b+3}], v[{vQ+4*ks}:{vQ+4*ks+3}], {c}")
            if n + 8 < 16: kread(n + 8)
        pv = [(k4, dt) for k4 in range(4) for dt in range(4)]
        def vread(n):
            k4, dt = pv[n]
            b = vVB + 4*(n % 8)
            off = k4*16*256
            e(f"ds_read_b64_tr_b16 v[{b}:{b+1}], v{vVA+dt} offset:{off}")
            e(f"ds_read_b64_tr_b16 v[{b+2}:{b+3}], v{vVA+dt} offset:{off + 2048}")
        vm.wait([('it', 4*it+2), ('it', 4*it+3)])
        e("s_barrier")
        for item in (4*it+10, 4*it+11):
            if item < 32: issue_item(item)
        if it == 6: issue_wo(0)
        for n in range(6): vread(n)
        e("s_nop 7")
        e(f"v_max3_f32 v{vT0}, v{vS}, v{vS+1}, v{vS+2}")
        for i in range(3, 31, 2):
            e(f"v_max3_f32 v{vT0}, v{vT0}, v{vS+i}, v{vS+i+1}")
        e(f"v_max_f32 v{vT0}, v{vT0}, v{vS+31}")
        e(f"v_mov_b32 v{vT1}, v{vT0}")
        e("s_nop 1")
        e(f"v_permlane32_swap_b32 v{vT0}, v{vT1}")
        e(f"v_max_f32 v{vT0}, v{vT0}, v{vT1}")
        e(f"v_mul_f32 v{vT0}, s{sC}, v{vT0}")
        e(f"v_max_f32 v{vT0}, v{vT0}, v{vM}")
        e(f"v_sub_f32 v{vT1}, v{vM}, v{vT0}")
        e(f"v_exp_f32 v{vT1}, v{vT1}")
        e(f"v_mov_b32 v{vM}, v{vT0}")
        for i in range(32):
            e(f"v_fma_f32 v{vS+i}, v{vS+i}, s{sC}, -v{vT0}")
        for i in range(32):
            e(f"v_exp_f32 v{vS+i}, v{vS+i}")
        e(f"v_mul_f32 v{vL}, v{vL}, v{vT1}")
        for i in range(64):
            e(f"v_mul_f32 v{vO+i}, v{vO+i}, v{vT1}")
        for i in range(16):
            e(f"v_cvt_pk_bf16_f32 v{vP+i}, v{vS+2*i}, v{vS+2*i+1}")
        e(f"v_add_f32 v{vT2}, v{vS}, v{vS+1}")
        e(f"v_add_f32 v{vT3}, v{vS+2}, v{vS+3}")
        for i in range(4, 32, 2):
            e(f"v_add_f32 v{vT2}, v{vT2}, v{vS+i}")
            e(f"v_add_f32 v{vT3}, v{vT3}, v{vS+i+1}")
        e(f"v_add_f32 v{vL}, v{vL}, v{vT2}")
        e(f"v_add_f32 v{vL}, v{vL}, v{vT3}")
        for n in range(16):
            k4, dt = pv[n]
            b = vVB + 4*(n % 8)
            outstanding_after = 2*min(5, 15-n)
            e(f"s_waitcnt lgkmcnt({outstanding_after})")
            p = vP + 4*k4
            e(f"v_mfma_f32_32x32x16_bf16 v[{vO+16*dt}:{vO+16*dt+15}], v[{b}:{b+3}], v[{p}:{p+3}], v[{vO+16*dt}:{vO+16*dt+15}]")
            if n + 6 < 16: vread(n + 6)
        if it < 7:
            d = lambda x: (entry(x+4) - entry(x)) * ENT
            sel(sDK, d(4*it), d(4*it+1))
            sel(sDV, d(4*it+2), d(4*it+3))
            for r in range(vKA, vKA+8): e(f"v_add_u32 v{r}, s{sDK}, v{r}")
            for r in range(vVA, vVA+4): e(f"v_add_u32 v{r}, s{sDV}, v{r}")
    stamp()
    e("s_nop 7"); e("s_nop 7")
    e(f"v_mov_b32 v{vT1}, v{vL}")
    e("s_nop 1")
    e(f"v_permlane32_swap_b32 v{vL}, v{vT1}")
    e(f"v_add_f32 v{vL}, v{vL}, v{vT1}")
    e("s_barrier")
    e(f"s_lshl_b32 s{sT0}, s{sW}, 13")
    e(f"s_add_u32 s{sT0}, s{sT0}, 73728")
    e(f"v_add_u32 v{vT4}, s{sT0}, v{vDUMP}")
    e(f"s_xor_b32 s{sT0}, s{sT0}, 0")
    e(f"s_xor_b32 s{sT1}, s{sW}, 4")
    e(f"s_lshl_b32 s{sT0}, s{sT1}, 13")
    e(f"s_add_u32 s{sT0}, s{sT0}, 73728")
    e(f"v_add_u32 v{vT5}, s{sT0}, v{vDUMP}")
    e(f"s_lshl_b32 s{sT0}, s{sW}, 9")
    e(f"s_add_u32 s{sT0}, s{sT0}, 139264")
    e(f"v_lshl_add_u32 v{vT2}, v{vLANE}, 2, s{sT0}")
    e(f"s_lshl_b32 s{sT0}, s{sT1}, 9")
    e(f"s_add_u32 s{sT0}, s{sT0}, 139264")
    e(f"v_lshl_add_u32 v{vT3}, v{vLANE}, 2, s{sT0}")
    e(f"ds_write_b32 v{vT2}, v{vM}")
    e(f"ds_write_b32 v{vT2}, v{vL} offset:256")
    e(f"s_cmp_eq_u32 s{sG}, 0")
    e("s_cbranch_scc1 L_mergeA")
    def merge(keep, give):
        for i in range(8):
            e(f"ds_write_b128 v{vT4}, v[{give+4*i}:{give+4*i+3}] offset:{i*1024}")
        e("s_waitcnt lgkmcnt(0)")
        e("s_barrier")
        e(f"ds_read_b32 v{vT0}, v{vT3}")
        e(f"ds_read_b32 v{vT1}, v{vT3} offset:256")
        for i in range(8):
            e(f"ds_read_b128 v[{vS+4*i}:{vS+4*i+3}], v{vT5} offset:{i*1024}")
        e("s_waitcnt lgkmcnt(8)")
        e(f"v_max_f32 v{vT2}, v{vM}, v{vT0}")
        e(f"v_sub_f32 v{vM}, v{vM}, v{vT2}")
        e(f"v_sub_f32 v{vT0}, v{vT0}, v{vT2}")
        e(f"v_exp_f32 v{vM}, v{vM}")
        e(f"v_exp_f32 v{vT0}, v{vT0}")
        e("s_nop 0")
        e(f"v_mul_f32 v{vL}, v{vL}, v{vM}")
        e(f"v_fma_f32 v{vL}, v{vT1}, v{vT0}, v{vL}")
        e(f"v_rcp_f32 v{vL}, v{vL}")
        e("s_nop 0")
        e(f"v_mul_f32 v{vM}, v{vM}, v{vL}")
        e(f"v_mul_f32 v{vT0}, v{vT0}, v{vL}")
        e("s_waitcnt lgkmcnt(0)")
        for i in range(32):
            o = keep + i
            e(f"v_mul_f32 v{o}, v{o}, v{vM}")
            e(f"v_fma_f32 v{o}, v{vS+i}, v{vT0}, v{o}")
        pk = vQ + (0 if keep == vO else 16)
        other = vQ + (16 if keep == vO else 0)
        for i in range(16):
            e(f"v_cvt_pk_bf16_f32 v{pk+i}, v{keep+2*i}, v{keep+2*i+1}")
        for i in range(4):
            e(f"ds_write_b128 v{vT5}, v[{pk+4*i}:{pk+4*i+3}] offset:{i*1024}")
        e("s_waitcnt lgkmcnt(0)")
        e("s_barrier")
        for i in range(4):
            e(f"ds_read_b128 v[{other+4*i}:{other+4*i+3}], v{vT4} offset:{i*1024}")
        e("s_waitcnt lgkmcnt(0)")
    merge(vO+32, vO)
    e("s_branch L_mergeDone")
    lab("L_mergeA")
    merge(vO, vO+32)
    lab("L_mergeDone")
    e("s_barrier")
    issue_wo(2); issue_wo(3)
    stamp()
    for j in range(8):
        vm.wait([('wo', j)])
        e("s_barrier")
        if j >= 1 and j + 3 < 8: issue_wo(j + 3)
        base = WOSLOT[j % 4]
        e(f"v_add_u32 v{vT0}, {base}, v{vWOA}")
        def wread(n):
            b = vVB + 4*(n % 8)
            e(f"ds_read_b64_tr_b16 v[{b}:{b+1}], v{vT0} offset:{n*64}")
            e(f"ds_read_b64_tr_b16 v[{b+2}:{b+3}], v{vT0} offset:{n*64 + 8*1152}")
        for n in range(7): wread(n)
        for n in range(9):
            b = vVB + 4*(n % 8)
            e(f"s_waitcnt lgkmcnt({2*min(6, 8-n)})")
            c = "0" if j == 0 else f"v[{vACC+16*n}:{vACC+16*n+15}]"
            e(f"v_mfma_f32_32x32x16_bf16 v[{vACC+16*n}:{vACC+16*n+15}], v[{b}:{b+3}], v[{vQ+4*j}:{vQ+4*j+3}], {c}")
            if n + 7 < 9: wread(n + 7)
    e("s_nop 7"); e("s_nop 7")
    e("s_barrier")
    stamp()
    e(f"s_lshl_b32 s{sT0}, s{sQH}, 5")
    e(f"v_add_u32 v{vST}, s{sT0}, v{vR16}")
    e(f"s_movk_i32 s{sT1}, 2320")
    e(f"v_mul_lo_u32 v{vST}, v{vST}, s{sT1}")
    e(f"v_lshl_add_u32 v{vST}, v{vH}, 4, v{vST}")
    e(f"s_mul_i32 s{sT0}, s{sG}, 1152")
    e(f"v_add_u32 v{vST}, s{sT0}, v{vST}")
    e(f"s_cmp_eq_u32 s{sHEAD}, 0")
    e("s_cbranch_scc1 L_head0")
    for i in range(36):
        nt, i4 = divmod(i, 4)
        e(f"ds_write_b128 v{vST}, v[{vACC+4*i}:{vACC+4*i+3}] offset:{nt*128 + i4*32}")
    e("s_waitcnt lgkmcnt(0)")
    e("s_barrier")
    e("s_branch L_headdone")
    lab("L_head0")
    e("s_barrier")
    for i0 in range(0, 36, 6):
        for i in range(i0, i0+6):
            bb = vVB + 4*(i - i0)
            nt, i4 = divmod(i, 4)
            e(f"ds_read_b128 v[{bb}:{bb+3}], v{vST} offset:{nt*128 + i4*32}")
        for i in range(i0, i0+6):
            bb = vVB + 4*(i - i0)
            nt, i4 = divmod(i, 4)
            e(f"s_waitcnt lgkmcnt({5 - (i - i0)})")
            for k in range(4):
                e(f"v_add_f32 v{vACC+4*i+k}, v{vACC+4*i+k}, v{bb+k}")
        for i in range(i0, i0+6):
            nt, i4 = divmod(i, 4)
            e(f"ds_write_b128 v{vST}, v[{vACC+4*i}:{vACC+4*i+3}] offset:{nt*128 + i4*32}")
    e("s_waitcnt lgkmcnt(0)")
    lab("L_headdone")
    e("s_barrier")
    e(f"s_mul_i32 s{sT0}, s{sW}, {8*2320}")
    e(f"v_add_u32 v{vT0}, s{sT0}, v{vDUMP}")
    e(f"s_mul_i32 s{sT1}, s{sW}, {8*2304}")
    for r in range(8):
        for k in range(2):
            bb = vO + 8*r + 4*k
            e(f"ds_read_b128 v[{bb}:{bb+3}], v{vT0} offset:{r*2320 + k*1024}")
    e(f"v_cmp_gt_u32 vcc, 16, v{vLANE}")
    for r in range(8):
        e(f"s_waitcnt lgkmcnt({14 - 2*r})")
        e(f"s_add_u32 s{sT2}, s{sT1}, {r*2304}")
        for k in range(2):
            bb = vO + 8*r + 4*k
            e(f"buffer_store_dwordx4 v[{bb}:{bb+3}], v{vDUMP}, s[{sPT}:{sPT+3}], s{sT2} offen offset:{k*1024}")
    e("s_and_saveexec_b64 s[44:45], vcc")
    for r in range(8):
        bb = vS + 4*r
        e(f"ds_read_b128 v[{bb}:{bb+3}], v{vT0} offset:{r*2320 + 2048}")
    for r in range(8):
        bb = vS + 4*r
        e(f"s_waitcnt lgkmcnt({7 - r})")
        e(f"s_add_u32 s{sT2}, s{sT1}, {r*2304}")
        e(f"buffer_store_dwordx4 v[{bb}:{bb+3}], v{vDUMP}, s[{sPT}:{sPT+3}], s{sT2} offen offset:2048")
    e("s_mov_b64 exec, s[44:45]")
    stamp()
    e("s_waitcnt vmcnt(0)")
    stamp()
    stamp_flush()
    lab("L_attn_done")
    e("s_endpgm")

def gen_reduce():
    lab("red_kernel")
    e("s_cmp_ge_u32 s2, 288")
    e("s_cbranch_scc1 L_red_done")
    e("s_load_dwordx2 s[4:5], s[0:1], 56")
    e("s_load_dwordx2 s[6:7], s[0:1], 40")
    e("s_mov_b32 s8, 0xe38e38f")
    e("s_mul_hi_u32 s9, s2, s8")
    e("s_mul_i32 s10, s9, 18")
    e("s_sub_u32 s10, s2, s10")
    e("s_lshl_b32 s10, s10, 8")
    e("v_add_u32 v1, s10, v0")
    e("v_lshlrev_b32 v2, 5, v1")
    e("v_lshlrev_b32 v3, 4, v1")
    e("s_waitcnt lgkmcnt(0)")
    e("s_mul_i32 s11, s9, 2359296")
    e("s_add_u32 s4, s4, s11")
    e("s_addc_u32 s5, s5, 0")
    e("s_mov_b32 s12, s4"); e("s_and_b32 s13, s5, 0xffff"); e("s_mov_b32 s14, 2359296"); e("s_mov_b32 s15, 0x00020000")
    e("s_mul_i32 s11, s9, 73728")
    e("s_add_u32 s6, s6, s11")
    e("s_addc_u32 s7, s7, 0")
    e("s_mov_b32 s16, s6"); e("s_and_b32 s17, s7, 0xffff"); e("s_mov_b32 s18, 73728"); e("s_mov_b32 s19, 0x00020000")
    for h in range(16):
        e(f"s_mov_b32 s20, {h*147456}")
        e(f"buffer_load_dwordx4 v[{8+8*h}:{8+8*h+3}], v2, s[12:15], s20 offen")
        e(f"buffer_load_dwordx4 v[{12+8*h}:{12+8*h+3}], v2, s[12:15], s20 offen offset:16")
    for h in range(1, 16):
        e(f"s_waitcnt vmcnt({2*(15-h)})")
        for k in range(8):
            e(f"v_add_f32 v{8+k}, v{8+k}, v{8+8*h+k}")
    for k in range(4):
        e(f"v_cvt_pk_bf16_f32 v{4+k}, v{8+2*k}, v{9+2*k}")
    e("buffer_store_dwordx4 v[4:7], v3, s[16:19], 0 offen")
    lab("L_red_done")
    e("s_endpgm")

HDR = """; Fused GQA attention: kernel 1 = Qproj + attention + out-proj partials, kernel 2 = reduce
; @launch kernel=attn_kernel grid=(256,1,1) block=(512,1,1) lds=163840
; @launch kernel=red_kernel grid=(288,1,1) block=(256,1,1) lds=0
.amdgcn_target "amdgcn-amd-amdhsa--gfx950"
.text
"""
def kd(name, nv):
    return f""".amdhsa_kernel {name}
  .amdhsa_next_free_vgpr {nv}
  .amdhsa_next_free_sgpr 100
  .amdhsa_accum_offset {nv}
  .amdhsa_group_segment_fixed_size 0
  .amdhsa_kernarg_size 64
  .amdhsa_user_sgpr_count 2
  .amdhsa_user_sgpr_kernarg_segment_ptr 1
  .amdhsa_system_sgpr_workgroup_id_x 1
.end_amdhsa_kernel
"""
out = [HDR]
for name, g in (("attn_kernel", gen_attn), ("red_kernel", gen_reduce)):
    L.clear()
    out.append(f".globl {name}\n.p2align 8\n.type {name},@function\n")
    g()
    out.append("\n".join(L) + "\n")
out.append('.section .rodata,"a"\n.p2align 6\n')
out.append(kd("attn_kernel", 256))
out.append(".p2align 6\n")
out.append(kd("red_kernel", 136))
open(sys.argv[1] if len(sys.argv) > 1 else "standalone__gqa_block_cached__near_ridge.s", "w").write("".join(out))
```

```python
import sys

L = []
def e(s): L.append("    " + s)
def lab(s): L.append(s + ":")
def cm(s): L.append("    ; " + s)

class VM:
    def __init__(self): self.q = []
    def issue(self, tag): self.q.append(tag)
    def wait(self, tags):
        last = -1
        for i, t in enumerate(self.q):
            if t in tags: last = i
        if last < 0: return
        n = len(self.q) - 1 - last
        assert n <= 63
        e(f"s_waitcnt vmcnt({n})")
        self.q = self.q[last+1:]
vm = VM()
import os
STAMP = os.environ.get("STAMP") == "1"
nst = [0]
def stamp():
    if not STAMP: return
    i = nst[0]; nst[0] += 1
    e("s_memtime s[60:61]")
    e("s_waitcnt lgkmcnt(0)")
    e(f"s_mov_b32 s{64+i}, s60")
def stamp_flush():
    if not STAMP: return
    e("s_cmp_lg_u32 s2, 37")
    e("s_cbranch_scc1 L_nostamp")
    e(f"s_cmp_lg_u32 s{sW}, 0")
    e("s_cbranch_scc1 L_nostamp")
    e("s_load_dwordx2 s[60:61], s[0:1], 48")
    e("s_waitcnt lgkmcnt(0)")
    e("s_mov_b32 s56, s60"); e("s_and_b32 s57, s61, 0xffff"); e("s_mov_b32 s58, 256"); e("s_mov_b32 s59, 0x00020000")
    e("v_mov_b32 v2, 0")
    for i in range(nst[0]):
        e(f"s_sub_u32 s62, s{64+i}, s64")
        e("v_mov_b32 v3, s62")
        e(f"buffer_store_dword v3, v2, s[56:59], 0 offen offset:{4*i}")
    e("s_waitcnt vmcnt(0)")
    lab("L_nostamp")

vLANE = 1
vKA = 2
vVA = 10
vKD = 14
vVD = 15
vM = 16; vL = 17
vT0 = 18; vT1 = 19; vT2 = 20; vT3 = 21; vT4 = 22; vT5 = 23
vQ = 24
vO = 56
vS = 120
vP = 152
vKB = 168
vVB = 200
vX = 56
vWQD = 232
vWQA = 233
vWOD = 236
vWOA = 241
vQW = 242
vDUMP = 243
vST = 244
vH = 245
vR16 = 246
vACC = 56

sK, sV, sWQ, sX, sWO, sPT = 4, 8, 12, 16, 20, 24
sW = 28; sG = 29; sQI = 30; sW1024 = 31
sT0 = 32; sT1 = 33; sT2 = 34; sT3 = 35
sC = 36
sSLOT = 37
sDELTA = 38
sHEAD = 39; sQH = 40

SLOT = 32768
def slot_of(t): return (t + 3) % 5

def srd(s, base_lo, base_hi, nbytes):
    e(f"s_mov_b32 s{s}, s{base_lo}")
    e(f"s_and_b32 s{s+1}, s{base_hi}, 0xffff")
    e(f"s_mov_b32 s{s+2}, {nbytes}")
    e(f"s_mov_b32 s{s+3}, 0x00020000")

def dma(voff, srdreg, soff_expr, m0_const, tag):
    e(f"s_add_u32 m0, s{sW1024}, {m0_const}")
    e(f"s_mov_b32 s{sT3}, {soff_expr}")
    e(f"buffer_load_dwordx4 v{voff}, s[{srdreg}:{srdreg+3}], s{sT3} offen lds")
    vm.issue(tag)

KVF = os.environ.get("KVF", "")
STF = os.environ.get("STF", "")
sROT = 41
sDK = 42; sDV = 43
vXA = 247; vXR = 251
ENT = 16384
def entry(item): return (item + 8) % 10
def issue_item(item):
    i, r = divmod(item, 4)
    t = 2*i + (r & 1)
    isV = r >= 2
    sl = entry(item) * ENT
    for k in range(2):
        e(f"s_add_u32 m0, s{sW1024}, {sl + k*8192}")
        e(f"s_add_u32 s{sT3}, s{sROT}, {t*16384 + k*8192}")
        e(f"s_and_b32 s{sT3}, s{sT3}, 0x3ffff")
        vo = vVD if isV else vKD
        sr = sV if isV else sK
        e(f"buffer_load_dwordx4 v{vo}, s[{sr}:{sr+3}], s{sT3} offen {KVF} lds")
        vm.issue(('it', item))

def issue_item_p(item):
    i, r = divmod(item, 4)
    t = 2*i + (r & 1)
    isV = r >= 2
    sl = entry(item) * ENT
    for k in range(4):
        e(f"s_add_u32 m0, s{sW1024}, {sl + k*4096 - 4096}")
        e(f"s_add_u32 s{sT3}, s{sROT}, {t*16384 + k*4096}")
        e(f"s_and_b32 s{sT3}, s{sT3}, 0x3ffff")
        vo = 251 if isV else 250
        sr = sV if isV else sK
        e(f"buffer_load_dwordx4 v{vo}, s[{sr}:{sr+3}], s{sT3} offen lds")
        vm.issue(('it', item))
HC = 20480
def issue_hc_l(j):
    sl = (j % 4) * HC
    for k in range(4):
        dma(vWQD, sWQ, (j*32 + k*8)*8192, sl + k*4096, ('hc', j))
    e(f"s_add_u32 m0, s{sW1024}, {sl + 16384}")
    e(f"s_mov_b32 s{sT3}, {j*64}")
    e(f"buffer_load_dwordx4 v{vXD}, s[{sX}:{sX+3}], s{sT3} offen lds")
    vm.issue(('hc', j))
def issue_hc(j):
    sl = (j % 4) * HC
    for k in range(2):
        dma(vWQD, sWQ, (j*32 + k*16)*8192, sl + k*8192, ('hc', j))
    e(f"s_and_b32 s{sT2}, s{sW1024}, 0xfff")
    e(f"s_add_u32 m0, s{sT2}, {sl + 16384}")
    e(f"s_mov_b32 s{sT3}, {j*64}")
    e(f"buffer_load_dwordx4 v{vXD}, s[{sX}:{sX+3}], s{sT3} offen lds")
    vm.issue(('hc', j))

WOSLOT = [0, 36864, 73728, 110592]
def issue_wo(j):
    sl = WOSLOT[j % 4]
    for k in range(5):
        if k < 4:
            dma(vWOD + k, sWO, j*16*1152, sl + k*8192, ('wo', j))
        else:
            e(f"s_and_b32 s{sT2}, s{sW1024}, 0xfff")
            e(f"s_add_u32 m0, s{sT2}, {sl + 32768}")
            e(f"s_mov_b32 s{sT3}, {j*16*1152}")
            e(f"buffer_load_dwordx4 v{vWOD+4}, s[{sWO}:{sWO+3}], s{sT3} offen lds")
            vm.issue(('wo', j))

def gen_attn():
    lab("attn_kernel")
    e("s_cmp_ge_u32 s2, 256")
    e("s_cbranch_scc1 L_attn_done")
    if os.environ.get("SWAPMAP") == "1":
        e("s_and_b32 s3, s2, 15")
        e("s_lshl_b32 s3, s3, 4")
        e("s_lshr_b32 s2, s2, 4")
        e("s_or_b32 s2, s2, s3")
    e("s_load_dwordx4 s[40:43], s[0:1], 0")
    e("s_load_dwordx4 s[44:47], s[0:1], 16")
    e("s_load_dwordx2 s[48:49], s[0:1], 32")
    e("s_load_dwordx2 s[50:51], s[0:1], 56")
    stamp()
    e(f"v_and_b32 v{vLANE}, 63, v0")
    e(f"v_lshrrev_b32 v{vT0}, 6, v0")
    e("s_nop 0")
    e(f"v_readfirstlane_b32 s{sW}, v{vT0}")
    e("s_nop 3")
    e(f"s_lshr_b32 s{sG}, s{sW}, 2")
    e(f"s_and_b32 s{sQI}, s{sW}, 3")
    e(f"s_lshl_b32 s{sW1024}, s{sW}, 10")
    e(f"s_lshr_b32 s{sHEAD}, s{sQI}, 1")
    e("s_waitcnt lgkmcnt(0)")
    e(f"s_lshl_b32 s{sT0}, s2, 18")
    e(f"s_lshr_b32 s{sT1}, s2, 14")
    e(f"s_add_u32 s42, s42, s{sT0}")
    e(f"s_addc_u32 s43, s43, s{sT1}")
    e(f"s_add_u32 s44, s44, s{sT0}")
    e(f"s_addc_u32 s45, s45, s{sT1}")
    srd(sK, 42, 43, 262144)
    srd(sV, 44, 45, 262144)
    e(f"s_and_b32 s{sT0}, s2, 15")
    e(f"s_lshl_b32 s{sT1}, s{sT0}, 9")
    e(f"s_add_u32 s46, s46, s{sT1}")
    e(f"s_addc_u32 s47, s47, 0")
    srd(sWQ, 46, 47, 0)
    e(f"s_sub_u32 s{sWQ+2}, {576*8192}, s{sT1}")
    e(f"s_lshr_b32 s{sT1}, s2, 4")
    e(f"s_mul_i32 s{sT2}, s{sT1}, 73728")
    e(f"s_add_u32 s40, s40, s{sT2}")
    e(f"s_addc_u32 s41, s41, 0")
    srd(sX, 40, 41, 73728)
    e(f"s_mul_i32 s{sT2}, s{sT0}, {256*1152}")
    e(f"s_add_u32 s48, s48, s{sT2}")
    e(f"s_addc_u32 s49, s49, 0")
    srd(sWO, 48, 49, 256*1152)
    e(f"s_mul_i32 s{sT2}, s2, 147456")
    e(f"s_add_u32 s50, s50, s{sT2}")
    e(f"s_addc_u32 s51, s51, 0")
    srd(sPT, 50, 51, 147456)
    e(f"s_and_b32 s{sQH}, s{sQI}, 1")
    e(f"s_lshr_b32 s{sROT}, s2, 3")
    e(f"s_and_b32 s{sROT}, s{sROT}, 15")
    e(f"s_lshl_b32 s{sROT}, s{sROT}, 14")
    e(f"s_mov_b32 s{sC}, 0x3e0293ee")
    e(f"v_lshrrev_b32 v{vH}, 5, v{vLANE}")
    e(f"v_and_b32 v{vR16}, 31, v{vLANE}")
    e(f"v_lshlrev_b32 v{vDUMP}, 4, v{vLANE}")
    e(f"v_lshrrev_b32 v{vT0}, 3, v{vLANE}")
    e(f"s_lshl_b32 s{sT0}, s{sW}, 3")
    e(f"v_add_u32 v{vT0}, s{sT0}, v{vT0}")
    e(f"v_bfe_u32 v{vT1}, v{vT0}, 1, 3")
    e(f"s_movk_i32 s{sT2}, 1152")
    e(f"v_mul_lo_u32 v{vT0}, v{vT0}, s{sT2}")
    e(f"v_and_b32 v{vT2}, 7, v{vLANE}")
    e(f"v_xor_b32 v{vT1}, v{vT1}, v{vT2}")
    e(f"v_lshl_add_u32 v{vXR}, v{vT1}, 4, v{vT0}")
    e(f"s_lshl_b32 s{sT0}, s{sQH}, 5")
    e(f"v_add_u32 v{vT0}, s{sT0}, v{vR16}")
    e(f"v_bfe_u32 v{vT1}, v{vT0}, 1, 3")
    e(f"v_lshlrev_b32 v{vT0}, 7, v{vT0}")
    e(f"v_add_u32 v{vT0}, 32768, v{vT0}")
    for c4 in range(4):
        e(f"v_or_b32 v{vT2}, {2*c4}, v{vH}")
        e(f"v_xor_b32 v{vT2}, v{vT2}, v{vT1}")
        e(f"v_lshl_add_u32 v{vXA+c4}, v{vT2}, 4, v{vT0}")
    e(f"s_lshl_b32 s{sT0}, s{sW}, 1")
    e(f"v_add_u32 v{vT1}, s{sT0}, v{vH}")
    e(f"v_and_b32 v{vT2}, 3, v{vT1}")
    e(f"v_lshlrev_b32 v{vT2}, 2, v{vT2}")
    e(f"v_xor_b32 v{vT2}, v{vT2}, v{vR16}")
    e(f"v_lshlrev_b32 v{vT2}, 4, v{vT2}")
    e(f"v_lshl_add_u32 v{vWQD}, v{vT1}, 13, v{vT2}")
    e(f"v_lshrrev_b32 v{vT0}, 4, v{vLANE}")
    e(f"v_and_b32 v{vT1}, 15, v{vLANE}")
    e(f"s_lshl_b32 s{sT0}, s{sQI}, 2")
    e(f"v_add_u32 v{vT2}, s{sT0}, v{vT0}")
    e(f"v_xor_b32 v{vT2}, v{vT2}, v{vT1}")
    e(f"v_lshlrev_b32 v{vT2}, 4, v{vT2}")
    e(f"s_lshl_b32 s{sT0}, s{sW}, 2")
    e(f"v_add_u32 v{vT3}, s{sT0}, v{vT0}")
    e(f"v_lshl_add_u32 v{vKD}, v{vT3}, 8, v{vT2}")
    e(f"v_lshlrev_b32 v{vT2}, 2, v{vT0}")
    e(f"v_xor_b32 v{vT2}, v{vT2}, v{vT1}")
    e(f"v_lshlrev_b32 v{vT2}, 4, v{vT2}")
    e(f"v_lshl_add_u32 v{vVD}, v{vT3}, 8, v{vT2}")
    e(f"v_and_b32 v{vT0}, 15, v{vLANE}")
    for ks in range(8):
        e(f"v_or_b32 v{vT1}, {2*ks}, v{vH}")
        e(f"v_xor_b32 v{vT1}, v{vT1}, v{vT0}")
        e(f"v_lshlrev_b32 v{vT1}, 4, v{vT1}")
        e(f"v_lshl_add_u32 v{vKA+ks}, v{vR16}, 8, v{vT1}")
    e(f"v_bfe_u32 v{vT0}, v{vLANE}, 4, 1")
    e(f"v_bfe_u32 v{vT1}, v{vLANE}, 2, 2")
    e(f"v_and_b32 v{vT2}, 3, v{vLANE}")
    e(f"v_lshlrev_b32 v{vT3}, 5, v{vT0}")
    e(f"v_lshl_add_u32 v{vT3}, v{vT2}, 3, v{vT3}")
    e(f"v_lshl_add_u32 v{vT4}, v{vH}, 2, v{vT1}")
    e(f"v_lshl_add_u32 v{vT4}, v{vT4}, 8, v{vT3}")
    for dt in range(4):
        e(f"v_xor_b32 v{vT5}, {dt}, v{vT1}")
        e(f"v_lshl_add_u32 v{vVA+dt}, v{vT5}, 6, v{vT4}")
    e(f"v_lshl_add_u32 v{vT4}, v{vH}, 3, v{vT1}")
    e(f"v_lshl_add_u32 v{vT4}, v{vT4}, 9, v{vT3}")
    e(f"s_lshl_b32 s{sT0}, s{sHEAD}, 2")
    e(f"s_lshl_b32 s{sT1}, s{sG}, 1")
    e(f"s_add_u32 s{sT0}, s{sT0}, s{sT1}")
    for dt in range(2):
        e(f"s_add_u32 s{sT1}, s{sT0}, {dt}")
        e(f"v_xor_b32 v{vT5}, s{sT1}, v{vT1}")
        e(f"v_lshl_add_u32 v{vWQA+dt}, v{vT5}, 6, v{vT4}")
    e(f"s_lshl_b32 s{sT0}, s{sHEAD}, 4")
    e(f"v_lshl_add_u32 v{vT4}, v{vH}, 2, v{vT1}")
    e(f"v_add_u32 v{vT4}, s{sT0}, v{vT4}")
    e(f"s_movk_i32 s{sT1}, 1152")
    e(f"v_mul_lo_u32 v{vT4}, v{vT4}, s{sT1}")
    e(f"s_mul_i32 s{sT0}, s{sG}, 576")
    e(f"v_add3_u32 v{vWOA}, v{vT4}, s{sT0}, v{vT3}")
    for k in range(5):
        if k < 4:
            e(f"s_add_u32 s{sT0}, s{sW1024}, {k*8192}")
        else:
            e(f"s_and_b32 s{sT0}, s{sW1024}, 0xfff")
            e(f"s_add_u32 s{sT0}, s{sT0}, 32768")
        e(f"v_add_u32 v{vT0}, s{sT0}, v{vDUMP}")
        e(f"v_mov_b32 v{vT1}, 18432")
        e(f"v_cmp_ge_u32 vcc, v{vT0}, v{vT1}")
        e(f"v_mov_b32 v{vT2}, 129024")
        e("s_nop 1")
        e(f"v_cndmask_b32 v{vT2}, 0, v{vT2}, vcc")
        e(f"v_add_u32 v{vWOD+k}, v{vT0}, v{vT2}")
    e(f"s_lshl_b32 s{sT0}, s{sQI}, 13")
    e(f"s_add_u32 s{sT0}, s{sT0}, 98304")
    e(f"v_lshlrev_b32 v{vQW}, 8, v{vR16}")
    e(f"v_add_u32 v{vQW}, s{sT0}, v{vQW}")
    e(f"v_lshl_add_u32 v{vQW}, v{vH}, 3, v{vQW}")
    CH = 40960
    def issue_ch(j):
        sl = (j % 3) * CH
        for k in range(4):
            dma(vWQD, sWQ, (j*64 + k*16)*8192, sl + k*8192, ('ch', j))
        dma(vXR, sX, j*128, sl + 32768, ('ch', j))
    issue_ch(0); issue_ch(1)
    issue_item(0); issue_item(1)
    for j in range(9):
        vm.wait([('ch', j)])
        e("s_barrier")
        if j % 3 == 0: stamp()
        if j + 2 < 9: issue_ch(j + 2)
        base = (j % 3) * CH
        e(f"v_add_u32 v{vT0}, {base}, v{vWQA}")
        e(f"v_add_u32 v{vT1}, {base}, v{vWQA+1}")
        xb = vKB
        for ks in range(4):
            e(f"v_add_u32 v{vT2+ks}, {base}, v{vXA+ks}")
        for ks in range(4):
            e(f"ds_read_b128 v[{xb+4*ks}:{xb+4*ks+3}], v{vT2+ks}")
        WA = [vT0, vT1]
        for n in range(8):
            ks, dt = divmod(n, 2)
            bb = vVB + 4*n
            if n == 5: e("s_waitcnt lgkmcnt(6)")
            e(f"ds_read_b64_tr_b16 v[{bb}:{bb+1}], v{WA[dt]} offset:{ks*8192}")
            e(f"ds_read_b64_tr_b16 v[{bb+2}:{bb+3}], v{WA[dt]} offset:{ks*8192 + 2048}")
        for n in range(8):
            ks, dt = divmod(n, 2)
            bb = vVB + 4*n
            e(f"s_waitcnt lgkmcnt({min(15, 2*(7-n))})")
            x = xb + 4*ks
            c = "0" if (j == 0 and ks == 0) else f"v[{vQ+16*dt}:{vQ+16*dt+15}]"
            e(f"v_mfma_f32_32x32x16_bf16 v[{vQ+16*dt}:{vQ+16*dt+15}], v[{bb}:{bb+3}], v[{x}:{x+3}], {c}")
    e("s_barrier")
    stamp()
    for it_ in range(2, 8): issue_item(it_)
    e("s_nop 7"); e("s_nop 7")
    e(f"v_and_b32 v{vT0}, 15, v{vLANE}")
    for dt in range(2):
        for i4 in range(4):
            a = vQ + 16*dt + 4*i4
            e(f"v_cvt_pk_bf16_f32 v{vT2}, v{a}, v{a+1}")
            e(f"v_cvt_pk_bf16_f32 v{vT3}, v{a+2}, v{a+3}")
            e(f"s_lshl_b32 s{sT0}, s{sG}, 3")
            e(f"s_add_u32 s{sT0}, s{sT0}, {dt*4 + i4}")
            e(f"v_xor_b32 v{vT4}, s{sT0}, v{vT0}")
            e(f"v_lshl_add_u32 v{vT4}, v{vT4}, 4, v{vQW}")
            e(f"ds_write_b64 v{vT4}, v[{vT2}:{vT3}]")
    e("s_waitcnt lgkmcnt(0)")
    e("s_barrier")
    e(f"s_lshl_b32 s{sT0}, s{sQI}, 13")
    e(f"s_add_u32 s{sT0}, s{sT0}, 98304")
    for ks in range(8):
        e(f"v_add_u32 v{vT0}, s{sT0}, v{vKA+ks}")
        e(f"ds_read_b128 v[{vQ+4*ks}:{vQ+4*ks+3}], v{vT0}")
    e(f"v_mov_b32 v{vM}, 0xff7fffff")
    e(f"v_mov_b32 v{vL}, 0")
    for i in range(64): e(f"v_mov_b32 v{vO+i}, 0")
    def sel(sreg, va, vb):
        e(f"s_mov_b32 s{sreg}, {vb}")
        e(f"s_cmp_eq_u32 s{sG}, 0")
        e(f"s_cselect_b32 s{sreg}, {va}, s{sreg}")
    sel(sDK, entry(0)*ENT, entry(1)*ENT)
    sel(sDV, entry(2)*ENT, entry(3)*ENT)
    for r in range(vKA, vKA+8): e(f"v_add_u32 v{r}, s{sDK}, v{r}")
    for r in range(vVA, vVA+4): e(f"v_add_u32 v{r}, s{sDV}, v{r}")
    e("s_waitcnt lgkmcnt(0)")
    for it in range(8):
        cm(f"---- iteration {it} ----")
        stamp()
        vm.wait([('it', 4*it), ('it', 4*it+1)])
        e("s_barrier")
        stamp()
        for item in (4*it+8, 4*it+9):
            if item < 32: issue_item(item)
        if it == 7: issue_wo(1)
        def kread(n):
            kvt, ks = divmod(n, 8)
            b = vKB + 4*(n % 8)
            e(f"ds_read_b128 v[{b}:{b+3}], v{vKA+ks} offset:{kvt*8192}")
        for n in range(8): kread(n)
        for n in range(16):
            kvt, ks = divmod(n, 8)
            b = vKB + 4*(n % 8)
            e(f"s_waitcnt lgkmcnt({min(7, 15-n)})")
            c = "0" if ks == 0 else f"v[{vS+16*kvt}:{vS+16*kvt+15}]"
            e(f"v_mfma_f32_32x32x16_bf16 v[{vS+16*kvt}:{vS+16*kvt+15}], v[{b}:{b+3}], v[{vQ+4*ks}:{vQ+4*ks+3}], {c}")
            if n + 8 < 16: kread(n + 8)
        pv = [(k4, dt) for k4 in range(4) for dt in range(4)]
        def vread(n):
            k4, dt = pv[n]
            b = vVB + 4*(n % 8)
            off = k4*16*256
            e(f"ds_read_b64_tr_b16 v[{b}:{b+1}], v{vVA+dt} offset:{off}")
            e(f"ds_read_b64_tr_b16 v[{b+2}:{b+3}], v{vVA+dt} offset:{off + 2048}")
        vm.wait([('it', 4*it+2), ('it', 4*it+3)])
        e("s_barrier")
        for item in (4*it+10, 4*it+11):
            if item < 32: issue_item(item)
        if it == 6: issue_wo(0)
        for n in range(6): vread(n)
        e("s_nop 7")
        e(f"v_max3_f32 v{vT0}, v{vS}, v{vS+1}, v{vS+2}")
        for i in range(3, 31, 2):
            e(f"v_max3_f32 v{vT0}, v{vT0}, v{vS+i}, v{vS+i+1}")
        e(f"v_max_f32 v{vT0}, v{vT0}, v{vS+31}")
        e(f"v_mov_b32 v{vT1}, v{vT0}")
        e("s_nop 1")
        e(f"v_permlane32_swap_b32 v{vT0}, v{vT1}")
        e(f"v_max_f32 v{vT0}, v{vT0}, v{vT1}")
        e(f"v_mul_f32 v{vT0}, s{sC}, v{vT0}")
        e(f"v_max_f32 v{vT0}, v{vT0}, v{vM}")
        e(f"v_sub_f32 v{vT1}, v{vM}, v{vT0}")
        e(f"v_exp_f32 v{vT1}, v{vT1}")
        e(f"v_mov_b32 v{vM}, v{vT0}")
        for i in range(32):
            e(f"v_fma_f32 v{vS+i}, v{vS+i}, s{sC}, -v{vT0}")
        for i in range(32):
            e(f"v_exp_f32 v{vS+i}, v{vS+i}")
        e(f"v_mul_f32 v{vL}, v{vL}, v{vT1}")
        for i in range(64):
            e(f"v_mul_f32 v{vO+i}, v{vO+i}, v{vT1}")
        for i in range(16):
            e(f"v_cvt_pk_bf16_f32 v{vP+i}, v{vS+2*i}, v{vS+2*i+1}")
        e(f"v_add_f32 v{vT2}, v{vS}, v{vS+1}")
        e(f"v_add_f32 v{vT3}, v{vS+2}, v{vS+3}")
        for i in range(4, 32, 2):
            e(f"v_add_f32 v{vT2}, v{vT2}, v{vS+i}")
            e(f"v_add_f32 v{vT3}, v{vT3}, v{vS+i+1}")
        e(f"v_add_f32 v{vL}, v{vL}, v{vT2}")
        e(f"v_add_f32 v{vL}, v{vL}, v{vT3}")
        for n in range(16):
            k4, dt = pv[n]
            b = vVB + 4*(n % 8)
            outstanding_after = 2*min(5, 15-n)
            e(f"s_waitcnt lgkmcnt({outstanding_after})")
            p = vP + 4*k4
            e(f"v_mfma_f32_32x32x16_bf16 v[{vO+16*dt}:{vO+16*dt+15}], v[{b}:{b+3}], v[{p}:{p+3}], v[{vO+16*dt}:{vO+16*dt+15}]")
            if n + 6 < 16: vread(n + 6)
        if it < 7:
            d = lambda x: (entry(x+4) - entry(x)) * ENT
            sel(sDK, d(4*it), d(4*it+1))
            sel(sDV, d(4*it+2), d(4*it+3))
            for r in range(vKA, vKA+8): e(f"v_add_u32 v{r}, s{sDK}, v{r}")
            for r in range(vVA, vVA+4): e(f"v_add_u32 v{r}, s{sDV}, v{r}")
    stamp()
    e("s_nop 7"); e("s_nop 7")
    e(f"v_mov_b32 v{vT1}, v{vL}")
    e("s_nop 1")
    e(f"v_permlane32_swap_b32 v{vL}, v{vT1}")
    e(f"v_add_f32 v{vL}, v{vL}, v{vT1}")
    e("s_barrier")
    e(f"s_lshl_b32 s{sT0}, s{sW}, 13")
    e(f"s_add_u32 s{sT0}, s{sT0}, 73728")
    e(f"v_add_u32 v{vT4}, s{sT0}, v{vDUMP}")
    e(f"s_xor_b32 s{sT0}, s{sT0}, 0")
    e(f"s_xor_b32 s{sT1}, s{sW}, 4")
    e(f"s_lshl_b32 s{sT0}, s{sT1}, 13")
    e(f"s_add_u32 s{sT0}, s{sT0}, 73728")
    e(f"v_add_u32 v{vT5}, s{sT0}, v{vDUMP}")
    e(f"s_lshl_b32 s{sT0}, s{sW}, 9")
    e(f"s_add_u32 s{sT0}, s{sT0}, 139264")
    e(f"v_lshl_add_u32 v{vT2}, v{vLANE}, 2, s{sT0}")
    e(f"s_lshl_b32 s{sT0}, s{sT1}, 9")
    e(f"s_add_u32 s{sT0}, s{sT0}, 139264")
    e(f"v_lshl_add_u32 v{vT3}, v{vLANE}, 2, s{sT0}")
    e(f"ds_write_b32 v{vT2}, v{vM}")
    e(f"ds_write_b32 v{vT2}, v{vL} offset:256")
    e(f"s_cmp_eq_u32 s{sG}, 0")
    e("s_cbranch_scc1 L_mergeA")
    def merge(keep, give):
        for i in range(8):
            e(f"ds_write_b128 v{vT4}, v[{give+4*i}:{give+4*i+3}] offset:{i*1024}")
        e("s_waitcnt lgkmcnt(0)")
        e("s_barrier")
        e(f"ds_read_b32 v{vT0}, v{vT3}")
        e(f"ds_read_b32 v{vT1}, v{vT3} offset:256")
        for i in range(8):
            e(f"ds_read_b128 v[{vS+4*i}:{vS+4*i+3}], v{vT5} offset:{i*1024}")
        e("s_waitcnt lgkmcnt(8)")
        e(f"v_max_f32 v{vT2}, v{vM}, v{vT0}")
        e(f"v_sub_f32 v{vM}, v{vM}, v{vT2}")
        e(f"v_sub_f32 v{vT0}, v{vT0}, v{vT2}")
        e(f"v_exp_f32 v{vM}, v{vM}")
        e(f"v_exp_f32 v{vT0}, v{vT0}")
        e("s_nop 0")
        e(f"v_mul_f32 v{vL}, v{vL}, v{vM}")
        e(f"v_fma_f32 v{vL}, v{vT1}, v{vT0}, v{vL}")
        e(f"v_rcp_f32 v{vL}, v{vL}")
        e("s_nop 0")
        e(f"v_mul_f32 v{vM}, v{vM}, v{vL}")
        e(f"v_mul_f32 v{vT0}, v{vT0}, v{vL}")
        e("s_waitcnt lgkmcnt(0)")
        for i in range(32):
            o = keep + i
            e(f"v_mul_f32 v{o}, v{o}, v{vM}")
            e(f"v_fma_f32 v{o}, v{vS+i}, v{vT0}, v{o}")
        pk = vQ + (0 if keep == vO else 16)
        other = vQ + (16 if keep == vO else 0)
        for i in range(16):
            e(f"v_cvt_pk_bf16_f32 v{pk+i}, v{keep+2*i}, v{keep+2*i+1}")
        for i in range(4):
            e(f"ds_write_b128 v{vT5}, v[{pk+4*i}:{pk+4*i+3}] offset:{i*1024}")
        e("s_waitcnt lgkmcnt(0)")
        e("s_barrier")
        for i in range(4):
            e(f"ds_read_b128 v[{other+4*i}:{other+4*i+3}], v{vT4} offset:{i*1024}")
        e("s_waitcnt lgkmcnt(0)")
    merge(vO+32, vO)
    e("s_branch L_mergeDone")
    lab("L_mergeA")
    merge(vO, vO+32)
    lab("L_mergeDone")
    e("s_barrier")
    issue_wo(2); issue_wo(3)
    stamp()
    for j in range(8):
        vm.wait([('wo', j)])
        e("s_barrier")
        if j >= 1 and j + 3 < 8: issue_wo(j + 3)
        base = WOSLOT[j % 4]
        e(f"v_add_u32 v{vT0}, {base}, v{vWOA}")
        def wread(n):
            b = vVB + 4*(n % 8)
            e(f"ds_read_b64_tr_b16 v[{b}:{b+1}], v{vT0} offset:{n*64}")
            e(f"ds_read_b64_tr_b16 v[{b+2}:{b+3}], v{vT0} offset:{n*64 + 8*1152}")
        for n in range(7): wread(n)
        for n in range(9):
            b = vVB + 4*(n % 8)
            e(f"s_waitcnt lgkmcnt({2*min(6, 8-n)})")
            c = "0" if j == 0 else f"v[{vACC+16*n}:{vACC+16*n+15}]"
            e(f"v_mfma_f32_32x32x16_bf16 v[{vACC+16*n}:{vACC+16*n+15}], v[{b}:{b+3}], v[{vQ+4*j}:{vQ+4*j+3}], {c}")
            if n + 7 < 9: wread(n + 7)
    e("s_nop 7"); e("s_nop 7")
    e("s_barrier")
    stamp()
    e(f"s_lshl_b32 s{sT0}, s{sQH}, 5")
    e(f"v_add_u32 v{vST}, s{sT0}, v{vR16}")
    e(f"s_movk_i32 s{sT1}, 2320")
    e(f"v_mul_lo_u32 v{vST}, v{vST}, s{sT1}")
    e(f"v_lshl_add_u32 v{vST}, v{vH}, 4, v{vST}")
    e(f"s_mul_i32 s{sT0}, s{sG}, 1152")
    e(f"v_add_u32 v{vST}, s{sT0}, v{vST}")
    e(f"s_cmp_eq_u32 s{sHEAD}, 0")
    e("s_cbranch_scc1 L_head0")
    for i in range(36):
        nt, i4 = divmod(i, 4)
        e(f"ds_write_b128 v{vST}, v[{vACC+4*i}:{vACC+4*i+3}] offset:{nt*128 + i4*32}")
    e("s_waitcnt lgkmcnt(0)")
    e("s_barrier")
    e("s_branch L_headdone")
    lab("L_head0")
    e("s_barrier")
    for i0 in range(0, 36, 6):
        for i in range(i0, i0+6):
            bb = vVB + 4*(i - i0)
            nt, i4 = divmod(i, 4)
            e(f"ds_read_b128 v[{bb}:{bb+3}], v{vST} offset:{nt*128 + i4*32}")
        for i in range(i0, i0+6):
            bb = vVB + 4*(i - i0)
            nt, i4 = divmod(i, 4)
            e(f"s_waitcnt lgkmcnt({5 - (i - i0)})")
            for k in range(4):
                e(f"v_add_f32 v{vACC+4*i+k}, v{vACC+4*i+k}, v{bb+k}")
        for i in range(i0, i0+6):
            nt, i4 = divmod(i, 4)
            e(f"ds_write_b128 v{vST}, v[{vACC+4*i}:{vACC+4*i+3}] offset:{nt*128 + i4*32}")
    e("s_waitcnt lgkmcnt(0)")
    lab("L_headdone")
    e("s_barrier")
    e(f"s_mul_i32 s{sT0}, s{sW}, {8*2320}")
    e(f"v_add_u32 v{vT0}, s{sT0}, v{vDUMP}")
    e(f"s_mul_i32 s{sT1}, s{sW}, {8*2304}")
    for r in range(8):
        for k in range(2):
            bb = vO + 8*r + 4*k
            e(f"ds_read_b128 v[{bb}:{bb+3}], v{vT0} offset:{r*2320 + k*1024}")
    e(f"v_cmp_gt_u32 vcc, 16, v{vLANE}")
    for r in range(8):
        e(f"s_waitcnt lgkmcnt({14 - 2*r})")
        e(f"s_add_u32 s{sT2}, s{sT1}, {r*2304}")
        for k in range(2):
            bb = vO + 8*r + 4*k
            e(f"buffer_store_dwordx4 v[{bb}:{bb+3}], v{vDUMP}, s[{sPT}:{sPT+3}], s{sT2} offen offset:{k*1024} {STF}")
    e("s_and_saveexec_b64 s[44:45], vcc")
    for r in range(8):
        bb = vS + 4*r
        e(f"ds_read_b128 v[{bb}:{bb+3}], v{vT0} offset:{r*2320 + 2048}")
    for r in range(8):
        bb = vS + 4*r
        e(f"s_waitcnt lgkmcnt({7 - r})")
        e(f"s_add_u32 s{sT2}, s{sT1}, {r*2304}")
        e(f"buffer_store_dwordx4 v[{bb}:{bb+3}], v{vDUMP}, s[{sPT}:{sPT+3}], s{sT2} offen offset:2048 {STF}")
    e("s_mov_b64 exec, s[44:45]")
    stamp()
    e("s_waitcnt vmcnt(0)")
    stamp()
    stamp_flush()
    lab("L_attn_done")
    e("s_endpgm")

def gen_reduce():
    lab("red_kernel")
    e("s_cmp_ge_u32 s2, 288")
    e("s_cbranch_scc1 L_red_done")
    e("s_load_dwordx2 s[4:5], s[0:1], 56")
    e("s_load_dwordx2 s[6:7], s[0:1], 40")
    e("s_mov_b32 s8, 0xe38e38f")
    e("s_mul_hi_u32 s9, s2, s8")
    e("s_mul_i32 s10, s9, 18")
    e("s_sub_u32 s10, s2, s10")
    e("s_lshl_b32 s10, s10, 8")
    e("v_add_u32 v1, s10, v0")
    e("v_lshlrev_b32 v2, 5, v1")
    e("v_lshlrev_b32 v3, 4, v1")
    e("s_waitcnt lgkmcnt(0)")
    e("s_mul_i32 s11, s9, 2359296")
    e("s_add_u32 s4, s4, s11")
    e("s_addc_u32 s5, s5, 0")
    e("s_mov_b32 s12, s4"); e("s_and_b32 s13, s5, 0xffff"); e("s_mov_b32 s14, 2359296"); e("s_mov_b32 s15, 0x00020000")
    e("s_mul_i32 s11, s9, 73728")
    e("s_add_u32 s6, s6, s11")
    e("s_addc_u32 s7, s7, 0")
    e("s_mov_b32 s16, s6"); e("s_and_b32 s17, s7, 0xffff"); e("s_mov_b32 s18, 73728"); e("s_mov_b32 s19, 0x00020000")
    for h in range(16):
        e(f"s_mov_b32 s20, {h*147456}")
        e(f"buffer_load_dwordx4 v[{8+8*h}:{8+8*h+3}], v2, s[12:15], s20 offen")
        e(f"buffer_load_dwordx4 v[{12+8*h}:{12+8*h+3}], v2, s[12:15], s20 offen offset:16")
    for h in range(1, 16):
        e(f"s_waitcnt vmcnt({2*(15-h)})")
        for k in range(8):
            e(f"v_add_f32 v{8+k}, v{8+k}, v{8+8*h+k}")
    for k in range(4):
        e(f"v_cvt_pk_bf16_f32 v{4+k}, v{8+2*k}, v{9+2*k}")
    e("buffer_store_dwordx4 v[4:7], v3, s[16:19], 0 offen")
    lab("L_red_done")
    e("s_endpgm")

HDR = """; Fused GQA attention: kernel 1 = Qproj + attention + out-proj partials, kernel 2 = reduce
; @launch kernel=attn_kernel grid=(256,1,1) block=(512,1,1) lds=163840
; @launch kernel=red_kernel grid=(288,1,1) block=(256,1,1) lds=0
.amdgcn_target "amdgcn-amd-amdhsa--gfx950"
.text
"""
def kd(name, nv):
    return f""".amdhsa_kernel {name}
  .amdhsa_next_free_vgpr {nv}
  .amdhsa_next_free_sgpr 100
  .amdhsa_accum_offset {nv}
  .amdhsa_group_segment_fixed_size 0
  .amdhsa_kernarg_size 64
  .amdhsa_user_sgpr_count 2
  .amdhsa_user_sgpr_kernarg_segment_ptr 1
  .amdhsa_system_sgpr_workgroup_id_x 1
.end_amdhsa_kernel
"""
out = [HDR]
for name, g in (("attn_kernel", gen_attn), ("red_kernel", gen_reduce)):
    L.clear()
    out.append(f".globl {name}\n.p2align 8\n.type {name},@function\n")
    g()
    out.append("\n".join(L) + "\n")
out.append('.section .rodata,"a"\n.p2align 6\n')
out.append(kd("attn_kernel", 256))
out.append(".p2align 6\n")
out.append(kd("red_kernel", 136))
open(sys.argv[1] if len(sys.argv) > 1 else "standalone__gqa_block_cached__near_ridge.s", "w").write("".join(out))
```

```python
import sys

L = []
def e(s): L.append("    " + s)
def lab(s): L.append(s + ":")
def cm(s): L.append("    ; " + s)

class VM:
    def __init__(self): self.q = []
    def issue(self, tag): self.q.append(tag)
    def wait(self, tags):
        last = -1
        for i, t in enumerate(self.q):
            if t in tags: last = i
        if last < 0: return
        n = len(self.q) - 1 - last
        assert n <= 63
        e(f"s_waitcnt vmcnt({n})")
        self.q = self.q[last+1:]
vm = VM()
import os
STAMP = os.environ.get("STAMP") == "1"
nst = [0]
def stamp():
    if not STAMP: return
    i = nst[0]; nst[0] += 1
    e("s_memtime s[60:61]")
    e("s_waitcnt lgkmcnt(0)")
    e(f"s_mov_b32 s{64+i}, s60")
def stamp_flush():
    if not STAMP: return
    e("s_cmp_lg_u32 s2, 37")
    e("s_cbranch_scc1 L_nostamp")
    e(f"s_cmp_lg_u32 s{sW}, 0")
    e("s_cbranch_scc1 L_nostamp")
    e("s_load_dwordx2 s[60:61], s[0:1], 48")
    e("s_waitcnt lgkmcnt(0)")
    e("s_mov_b32 s56, s60"); e("s_and_b32 s57, s61, 0xffff"); e("s_mov_b32 s58, 256"); e("s_mov_b32 s59, 0x00020000")
    e("v_mov_b32 v2, 0")
    for i in range(nst[0]):
        e(f"s_sub_u32 s62, s{64+i}, s64")
        e("v_mov_b32 v3, s62")
        e(f"buffer_store_dword v3, v2, s[56:59], 0 offen offset:{4*i}")
    e("s_waitcnt vmcnt(0)")
    lab("L_nostamp")

vLANE = 1
vKA = 2
vVA = 10
vKD = 14
vVD = 15
vM = 16; vL = 17
vT0 = 18; vT1 = 19; vT2 = 20; vT3 = 21; vT4 = 22; vT5 = 23
vQ = 24
vO = 56
vS = 120
vP = 152
vKB = 168
vVB = 200
vX = 56
vWQD = 232
vWQA = 233
vWOD = 236
vWOA = 241
vQW = 242
vDUMP = 243
vST = 244
vH = 245
vR16 = 246
vACC = 56

sK, sV, sWQ, sX, sWO, sPT = 4, 8, 12, 16, 20, 24
sW = 28; sG = 29; sQI = 30; sW1024 = 31
sT0 = 32; sT1 = 33; sT2 = 34; sT3 = 35
sC = 36
sSLOT = 37
sDELTA = 38
sHEAD = 39; sQH = 40

SLOT = 32768
def slot_of(t): return (t + 3) % 5

def srd(s, base_lo, base_hi, nbytes):
    e(f"s_mov_b32 s{s}, s{base_lo}")
    e(f"s_and_b32 s{s+1}, s{base_hi}, 0xffff")
    e(f"s_mov_b32 s{s+2}, {nbytes}")
    e(f"s_mov_b32 s{s+3}, 0x00020000")

def dma(voff, srdreg, soff_expr, m0_const, tag):
    e(f"s_add_u32 m0, s{sW1024}, {m0_const}")
    e(f"s_mov_b32 s{sT3}, {soff_expr}")
    e(f"buffer_load_dwordx4 v{voff}, s[{srdreg}:{srdreg+3}], s{sT3} offen lds")
    vm.issue(tag)

KVF = os.environ.get("KVF", "nt")
STF = os.environ.get("STF", "sc1")
sROT = 41
sDK = 42; sDV = 43
vXA = 247; vXR = 251
ENT = 16384
def entry(item): return (item + 8) % 10
def issue_item(item):
    i, r = divmod(item, 4)
    t = 2*i + (r & 1)
    isV = r >= 2
    sl = entry(item) * ENT
    for k in range(2):
        e(f"s_add_u32 m0, s{sW1024}, {sl + k*8192}")
        e(f"s_add_u32 s{sT3}, s{sROT}, {t*16384 + k*8192}")
        e(f"s_and_b32 s{sT3}, s{sT3}, 0x3ffff")
        vo = vVD if isV else vKD
        sr = sV if isV else sK
        e(f"buffer_load_dwordx4 v{vo}, s[{sr}:{sr+3}], s{sT3} offen {KVF} lds")
        vm.issue(('it', item))

def issue_item_p(item):
    i, r = divmod(item, 4)
    t = 2*i + (r & 1)
    isV = r >= 2
    sl = entry(item) * ENT
    for k in range(4):
        e(f"s_add_u32 m0, s{sW1024}, {sl + k*4096 - 4096}")
        e(f"s_add_u32 s{sT3}, s{sROT}, {t*16384 + k*4096}")
        e(f"s_and_b32 s{sT3}, s{sT3}, 0x3ffff")
        vo = 251 if isV else 250
        sr = sV if isV else sK
        e(f"buffer_load_dwordx4 v{vo}, s[{sr}:{sr+3}], s{sT3} offen lds")
        vm.issue(('it', item))
HC = 20480
def issue_hc_l(j):
    sl = (j % 4) * HC
    for k in range(4):
        dma(vWQD, sWQ, (j*32 + k*8)*8192, sl + k*4096, ('hc', j))
    e(f"s_add_u32 m0, s{sW1024}, {sl + 16384}")
    e(f"s_mov_b32 s{sT3}, {j*64}")
    e(f"buffer_load_dwordx4 v{vXD}, s[{sX}:{sX+3}], s{sT3} offen lds")
    vm.issue(('hc', j))
def issue_hc(j):
    sl = (j % 4) * HC
    for k in range(2):
        dma(vWQD, sWQ, (j*32 + k*16)*8192, sl + k*8192, ('hc', j))
    e(f"s_and_b32 s{sT2}, s{sW1024}, 0xfff")
    e(f"s_add_u32 m0, s{sT2}, {sl + 16384}")
    e(f"s_mov_b32 s{sT3}, {j*64}")
    e(f"buffer_load_dwordx4 v{vXD}, s[{sX}:{sX+3}], s{sT3} offen lds")
    vm.issue(('hc', j))

WOSLOT = [0, 36864, 73728, 110592]
def issue_wo(j):
    sl = WOSLOT[j % 4]
    for k in range(5):
        if k < 4:
            dma(vWOD + k, sWO, j*16*1152, sl + k*8192, ('wo', j))
        else:
            e(f"s_and_b32 s{sT2}, s{sW1024}, 0xfff")
            e(f"s_add_u32 m0, s{sT2}, {sl + 32768}")
            e(f"s_mov_b32 s{sT3}, {j*16*1152}")
            e(f"buffer_load_dwordx4 v{vWOD+4}, s[{sWO}:{sWO+3}], s{sT3} offen lds")
            vm.issue(('wo', j))

def gen_attn():
    lab("attn_kernel")
    e("s_cmp_ge_u32 s2, 256")
    e("s_cbranch_scc1 L_attn_done")
    if os.environ.get("SWAPMAP") == "1":
        e("s_and_b32 s3, s2, 15")
        e("s_lshl_b32 s3, s3, 4")
        e("s_lshr_b32 s2, s2, 4")
        e("s_or_b32 s2, s2, s3")
    e("s_load_dwordx4 s[40:43], s[0:1], 0")
    e("s_load_dwordx4 s[44:47], s[0:1], 16")
    e("s_load_dwordx2 s[48:49], s[0:1], 32")
    e("s_load_dwordx2 s[50:51], s[0:1], 56")
    stamp()
    e(f"v_and_b32 v{vLANE}, 63, v0")
    e(f"v_lshrrev_b32 v{vT0}, 6, v0")
    e("s_nop 0")
    e(f"v_readfirstlane_b32 s{sW}, v{vT0}")
    e("s_nop 3")
    e(f"s_lshr_b32 s{sG}, s{sW}, 2")
    e(f"s_and_b32 s{sQI}, s{sW}, 3")
    e(f"s_lshl_b32 s{sW1024}, s{sW}, 10")
    e(f"s_lshr_b32 s{sHEAD}, s{sQI}, 1")
    e("s_waitcnt lgkmcnt(0)")
    e(f"s_lshl_b32 s{sT0}, s2, 18")
    e(f"s_lshr_b32 s{sT1}, s2, 14")
    e(f"s_add_u32 s42, s42, s{sT0}")
    e(f"s_addc_u32 s43, s43, s{sT1}")
    e(f"s_add_u32 s44, s44, s{sT0}")
    e(f"s_addc_u32 s45, s45, s{sT1}")
    srd(sK, 42, 43, 262144)
    srd(sV, 44, 45, 262144)
    e(f"s_and_b32 s{sT0}, s2, 15")
    e(f"s_lshl_b32 s{sT1}, s{sT0}, 9")
    e(f"s_add_u32 s46, s46, s{sT1}")
    e(f"s_addc_u32 s47, s47, 0")
    srd(sWQ, 46, 47, 0)
    e(f"s_sub_u32 s{sWQ+2}, {576*8192}, s{sT1}")
    e(f"s_lshr_b32 s{sT1}, s2, 4")
    e(f"s_mul_i32 s{sT2}, s{sT1}, 73728")
    e(f"s_add_u32 s40, s40, s{sT2}")
    e(f"s_addc_u32 s41, s41, 0")
    srd(sX, 40, 41, 73728)
    e(f"s_mul_i32 s{sT2}, s{sT0}, {256*1152}")
    e(f"s_add_u32 s48, s48, s{sT2}")
    e(f"s_addc_u32 s49, s49, 0")
    srd(sWO, 48, 49, 256*1152)
    e(f"s_mul_i32 s{sT2}, s2, 147456")
    e(f"s_add_u32 s50, s50, s{sT2}")
    e(f"s_addc_u32 s51, s51, 0")
    srd(sPT, 50, 51, 147456)
    e(f"s_and_b32 s{sQH}, s{sQI}, 1")
    e(f"s_lshr_b32 s{sROT}, s2, 3")
    e(f"s_and_b32 s{sROT}, s{sROT}, 15")
    e(f"s_lshl_b32 s{sROT}, s{sROT}, 14")
    e(f"s_mov_b32 s{sC}, 0x3e0293ee")
    e(f"v_lshrrev_b32 v{vH}, 5, v{vLANE}")
    e(f"v_and_b32 v{vR16}, 31, v{vLANE}")
    e(f"v_lshlrev_b32 v{vDUMP}, 4, v{vLANE}")
    e(f"v_lshrrev_b32 v{vT0}, 3, v{vLANE}")
    e(f"s_lshl_b32 s{sT0}, s{sW}, 3")
    e(f"v_add_u32 v{vT0}, s{sT0}, v{vT0}")
    e(f"v_bfe_u32 v{vT1}, v{vT0}, 1, 3")
    e(f"s_movk_i32 s{sT2}, 1152")
    e(f"v_mul_lo_u32 v{vT0}, v{vT0}, s{sT2}")
    e(f"v_and_b32 v{vT2}, 7, v{vLANE}")
    e(f"v_xor_b32 v{vT1}, v{vT1}, v{vT2}")
    e(f"v_lshl_add_u32 v{vXR}, v{vT1}, 4, v{vT0}")
    e(f"s_lshl_b32 s{sT0}, s{sQH}, 5")
    e(f"v_add_u32 v{vT0}, s{sT0}, v{vR16}")
    e(f"v_bfe_u32 v{vT1}, v{vT0}, 1, 3")
    e(f"v_lshlrev_b32 v{vT0}, 7, v{vT0}")
    e(f"v_add_u32 v{vT0}, 32768, v{vT0}")
    for c4 in range(4):
        e(f"v_or_b32 v{vT2}, {2*c4}, v{vH}")
        e(f"v_xor_b32 v{vT2}, v{vT2}, v{vT1}")
        e(f"v_lshl_add_u32 v{vXA+c4}, v{vT2}, 4, v{vT0}")
    e(f"s_lshl_b32 s{sT0}, s{sW}, 1")
    e(f"v_add_u32 v{vT1}, s{sT0}, v{vH}")
    e(f"v_and_b32 v{vT2}, 3, v{vT1}")
    e(f"v_lshlrev_b32 v{vT2}, 2, v{vT2}")
    e(f"v_xor_b32 v{vT2}, v{vT2}, v{vR16}")
    e(f"v_lshlrev_b32 v{vT2}, 4, v{vT2}")
    e(f"v_lshl_add_u32 v{vWQD}, v{vT1}, 13, v{vT2}")
    e(f"v_lshrrev_b32 v{vT0}, 4, v{vLANE}")
    e(f"v_and_b32 v{vT1}, 15, v{vLANE}")
    e(f"s_lshl_b32 s{sT0}, s{sQI}, 2")
    e(f"v_add_u32 v{vT2}, s{sT0}, v{vT0}")
    e(f"v_xor_b32 v{vT2}, v{vT2}, v{vT1}")
    e(f"v_lshlrev_b32 v{vT2}, 4, v{vT2}")
    e(f"s_lshl_b32 s{sT0}, s{sW}, 2")
    e(f"v_add_u32 v{vT3}, s{sT0}, v{vT0}")
    e(f"v_lshl_add_u32 v{vKD}, v{vT3}, 8, v{vT2}")
    e(f"v_lshlrev_b32 v{vT2}, 2, v{vT0}")
    e(f"v_xor_b32 v{vT2}, v{vT2}, v{vT1}")
    e(f"v_lshlrev_b32 v{vT2}, 4, v{vT2}")
    e(f"v_lshl_add_u32 v{vVD}, v{vT3}, 8, v{vT2}")
    e(f"v_and_b32 v{vT0}, 15, v{vLANE}")
    for ks in range(8):
        e(f"v_or_b32 v{vT1}, {2*ks}, v{vH}")
        e(f"v_xor_b32 v{vT1}, v{vT1}, v{vT0}")
        e(f"v_lshlrev_b32 v{vT1}, 4, v{vT1}")
        e(f"v_lshl_add_u32 v{vKA+ks}, v{vR16}, 8, v{vT1}")
    e(f"v_bfe_u32 v{vT0}, v{vLANE}, 4, 1")
    e(f"v_bfe_u32 v{vT1}, v{vLANE}, 2, 2")
    e(f"v_and_b32 v{vT2}, 3, v{vLANE}")
    e(f"v_lshlrev_b32 v{vT3}, 5, v{vT0}")
    e(f"v_lshl_add_u32 v{vT3}, v{vT2}, 3, v{vT3}")
    e(f"v_lshl_add_u32 v{vT4}, v{vH}, 2, v{vT1}")
    e(f"v_lshl_add_u32 v{vT4}, v{vT4}, 8, v{vT3}")
    for dt in range(4):
        e(f"v_xor_b32 v{vT5}, {dt}, v{vT1}")
        e(f"v_lshl_add_u32 v{vVA+dt}, v{vT5}, 6, v{vT4}")
    e(f"v_lshl_add_u32 v{vT4}, v{vH}, 3, v{vT1}")
    e(f"v_lshl_add_u32 v{vT4}, v{vT4}, 9, v{vT3}")
    e(f"s_lshl_b32 s{sT0}, s{sHEAD}, 2")
    e(f"s_lshl_b32 s{sT1}, s{sG}, 1")
    e(f"s_add_u32 s{sT0}, s{sT0}, s{sT1}")
    for dt in range(2):
        e(f"s_add_u32 s{sT1}, s{sT0}, {dt}")
        e(f"v_xor_b32 v{vT5}, s{sT1}, v{vT1}")
        e(f"v_lshl_add_u32 v{vWQA+dt}, v{vT5}, 6, v{vT4}")
    e(f"s_lshl_b32 s{sT0}, s{sHEAD}, 4")
    e(f"v_lshl_add_u32 v{vT4}, v{vH}, 2, v{vT1}")
    e(f"v_add_u32 v{vT4}, s{sT0}, v{vT4}")
    e(f"s_movk_i32 s{sT1}, 1152")
    e(f"v_mul_lo_u32 v{vT4}, v{vT4}, s{sT1}")
    e(f"s_mul_i32 s{sT0}, s{sG}, 576")
    e(f"v_add3_u32 v{vWOA}, v{vT4}, s{sT0}, v{vT3}")
    for k in range(5):
        if k < 4:
            e(f"s_add_u32 s{sT0}, s{sW1024}, {k*8192}")
        else:
            e(f"s_and_b32 s{sT0}, s{sW1024}, 0xfff")
            e(f"s_add_u32 s{sT0}, s{sT0}, 32768")
        e(f"v_add_u32 v{vT0}, s{sT0}, v{vDUMP}")
        e(f"v_mov_b32 v{vT1}, 18432")
        e(f"v_cmp_ge_u32 vcc, v{vT0}, v{vT1}")
        e(f"v_mov_b32 v{vT2}, 129024")
        e("s_nop 1")
        e(f"v_cndmask_b32 v{vT2}, 0, v{vT2}, vcc")
        e(f"v_add_u32 v{vWOD+k}, v{vT0}, v{vT2}")
    e(f"s_lshl_b32 s{sT0}, s{sQI}, 13")
    e(f"s_add_u32 s{sT0}, s{sT0}, 98304")
    e(f"v_lshlrev_b32 v{vQW}, 8, v{vR16}")
    e(f"v_add_u32 v{vQW}, s{sT0}, v{vQW}")
    e(f"v_lshl_add_u32 v{vQW}, v{vH}, 3, v{vQW}")
    CH = 40960
    def issue_ch(j):
        sl = (j % 3) * CH
        for k in range(4):
            dma(vWQD, sWQ, (j*64 + k*16)*8192, sl + k*8192, ('ch', j))
        dma(vXR, sX, j*128, sl + 32768, ('ch', j))
    issue_ch(0); issue_ch(1)
    issue_item(0); issue_item(1)
    for j in range(9):
        vm.wait([('ch', j)])
        e("s_barrier")
        if j % 3 == 0: stamp()
        if j + 2 < 9: issue_ch(j + 2)
        base = (j % 3) * CH
        e(f"v_add_u32 v{vT0}, {base}, v{vWQA}")
        e(f"v_add_u32 v{vT1}, {base}, v{vWQA+1}")
        xb = vKB
        for ks in range(4):
            e(f"v_add_u32 v{vT2+ks}, {base}, v{vXA+ks}")
        for ks in range(4):
            e(f"ds_read_b128 v[{xb+4*ks}:{xb+4*ks+3}], v{vT2+ks}")
        WA = [vT0, vT1]
        for n in range(8):
            ks, dt = divmod(n, 2)
            bb = vVB + 4*n
            if n == 5: e("s_waitcnt lgkmcnt(6)")
            e(f"ds_read_b64_tr_b16 v[{bb}:{bb+1}], v{WA[dt]} offset:{ks*8192}")
            e(f"ds_read_b64_tr_b16 v[{bb+2}:{bb+3}], v{WA[dt]} offset:{ks*8192 + 2048}")
        for n in range(8):
            ks, dt = divmod(n, 2)
            bb = vVB + 4*n
            e(f"s_waitcnt lgkmcnt({min(15, 2*(7-n))})")
            x = xb + 4*ks
            c = "0" if (j == 0 and ks == 0) else f"v[{vQ+16*dt}:{vQ+16*dt+15}]"
            e(f"v_mfma_f32_32x32x16_bf16 v[{vQ+16*dt}:{vQ+16*dt+15}], v[{bb}:{bb+3}], v[{x}:{x+3}], {c}")
    e("s_barrier")
    stamp()
    for it_ in range(2, 8): issue_item(it_)
    e("s_nop 7"); e("s_nop 7")
    e(f"v_and_b32 v{vT0}, 15, v{vLANE}")
    for dt in range(2):
        for i4 in range(4):
            a = vQ + 16*dt + 4*i4
            e(f"v_cvt_pk_bf16_f32 v{vT2}, v{a}, v{a+1}")
            e(f"v_cvt_pk_bf16_f32 v{vT3}, v{a+2}, v{a+3}")
            e(f"s_lshl_b32 s{sT0}, s{sG}, 3")
            e(f"s_add_u32 s{sT0}, s{sT0}, {dt*4 + i4}")
            e(f"v_xor_b32 v{vT4}, s{sT0}, v{vT0}")
            e(f"v_lshl_add_u32 v{vT4}, v{vT4}, 4, v{vQW}")
            e(f"ds_write_b64 v{vT4}, v[{vT2}:{vT3}]")
    e("s_waitcnt lgkmcnt(0)")
    e("s_barrier")
    e(f"s_lshl_b32 s{sT0}, s{sQI}, 13")
    e(f"s_add_u32 s{sT0}, s{sT0}, 98304")
    for ks in range(8):
        e(f"v_add_u32 v{vT0}, s{sT0}, v{vKA+ks}")
        e(f"ds_read_b128 v[{vQ+4*ks}:{vQ+4*ks+3}], v{vT0}")
    e(f"v_mov_b32 v{vM}, 0xff7fffff")
    e(f"v_mov_b32 v{vL}, 0")
    for i in range(64): e(f"v_mov_b32 v{vO+i}, 0")
    def sel(sreg, va, vb):
        e(f"s_mov_b32 s{sreg}, {vb}")
        e(f"s_cmp_eq_u32 s{sG}, 0")
        e(f"s_cselect_b32 s{sreg}, {va}, s{sreg}")
    sel(sDK, entry(0)*ENT, entry(1)*ENT)
    sel(sDV, entry(2)*ENT, entry(3)*ENT)
    for r in range(vKA, vKA+8): e(f"v_add_u32 v{r}, s{sDK}, v{r}")
    for r in range(vVA, vVA+4): e(f"v_add_u32 v{r}, s{sDV}, v{r}")
    e("s_waitcnt lgkmcnt(0)")
    for it in range(8):
        cm(f"---- iteration {it} ----")
        stamp()
        vm.wait([('it', 4*it), ('it', 4*it+1)])
        e("s_barrier")
        stamp()
        for item in (4*it+8, 4*it+9):
            if item < 32: issue_item(item)
        if it == 7: issue_wo(1)
        if it == 2:
            e(f"s_lshr_b32 s{sT0}, s2, 4")
            e(f"s_mul_i32 s{sT0}, s{sT0}, 18432")
            e(f"s_add_u32 s{sT0}, s{sT0}, s{sW1024}")
            for k in range(2):
                e(f"buffer_load_dwordx4 v[252:255], v{vDUMP}, s[{sWO}:{sWO+3}], s{sT0} offen")
                vm.issue('pf')
                e(f"s_add_u32 s{sT0}, s{sT0}, 8192")
            e(f"s_and_b32 s{sT1}, s{sW1024}, 0x7ff")
            e(f"s_sub_u32 s{sT0}, s{sT0}, s{sW1024}")
            e(f"s_add_u32 s{sT0}, s{sT0}, s{sT1}")
            e(f"buffer_load_dwordx4 v[252:255], v{vDUMP}, s[{sWO}:{sWO+3}], s{sT0} offen")
            vm.issue('pf')
        def kread(n):
            kvt, ks = divmod(n, 8)
            b = vKB + 4*(n % 8)
            e(f"ds_read_b128 v[{b}:{b+3}], v{vKA+ks} offset:{kvt*8192}")
        for n in range(8): kread(n)
        for n in range(16):
            kvt, ks = divmod(n, 8)
            b = vKB + 4*(n % 8)
            e(f"s_waitcnt lgkmcnt({min(7, 15-n)})")
            c = "0" if ks == 0 else f"v[{vS+16*kvt}:{vS+16*kvt+15}]"
            e(f"v_mfma_f32_32x32x16_bf16 v[{vS+16*kvt}:{vS+16*kvt+15}], v[{b}:{b+3}], v[{vQ+4*ks}:{vQ+4*ks+3}], {c}")
            if n + 8 < 16: kread(n + 8)
        pv = [(k4, dt) for k4 in range(4) for dt in range(4)]
        def vread(n):
            k4, dt = pv[n]
            b = vVB + 4*(n % 8)
            off = k4*16*256
            e(f"ds_read_b64_tr_b16 v[{b}:{b+1}], v{vVA+dt} offset:{off}")
            e(f"ds_read_b64_tr_b16 v[{b+2}:{b+3}], v{vVA+dt} offset:{off + 2048}")
        vm.wait([('it', 4*it+2), ('it', 4*it+3)])
        e("s_barrier")
        for item in (4*it+10, 4*it+11):
            if item < 32: issue_item(item)
        if it == 6: issue_wo(0)
        for n in range(6): vread(n)
        e("s_nop 7")
        e(f"v_max3_f32 v{vT0}, v{vS}, v{vS+1}, v{vS+2}")
        for i in range(3, 31, 2):
            e(f"v_max3_f32 v{vT0}, v{vT0}, v{vS+i}, v{vS+i+1}")
        e(f"v_max_f32 v{vT0}, v{vT0}, v{vS+31}")
        e(f"v_mov_b32 v{vT1}, v{vT0}")
        e("s_nop 1")
        e(f"v_permlane32_swap_b32 v{vT0}, v{vT1}")
        e(f"v_max_f32 v{vT0}, v{vT0}, v{vT1}")
        e(f"v_mul_f32 v{vT0}, s{sC}, v{vT0}")
        e(f"v_max_f32 v{vT0}, v{vT0}, v{vM}")
        e(f"v_sub_f32 v{vT1}, v{vM}, v{vT0}")
        e(f"v_exp_f32 v{vT1}, v{vT1}")
        e(f"v_mov_b32 v{vM}, v{vT0}")
        for i in range(32):
            e(f"v_fma_f32 v{vS+i}, v{vS+i}, s{sC}, -v{vT0}")
        for i in range(32):
            e(f"v_exp_f32 v{vS+i}, v{vS+i}")
        e(f"v_mul_f32 v{vL}, v{vL}, v{vT1}")
        for i in range(64):
            e(f"v_mul_f32 v{vO+i}, v{vO+i}, v{vT1}")
        for i in range(16):
            e(f"v_cvt_pk_bf16_f32 v{vP+i}, v{vS+2*i}, v{vS+2*i+1}")
        e(f"v_add_f32 v{vT2}, v{vS}, v{vS+1}")
        e(f"v_add_f32 v{vT3}, v{vS+2}, v{vS+3}")
        for i in range(4, 32, 2):
            e(f"v_add_f32 v{vT2}, v{vT2}, v{vS+i}")
            e(f"v_add_f32 v{vT3}, v{vT3}, v{vS+i+1}")
        e(f"v_add_f32 v{vL}, v{vL}, v{vT2}")
        e(f"v_add_f32 v{vL}, v{vL}, v{vT3}")
        for n in range(16):
            k4, dt = pv[n]
            b = vVB + 4*(n % 8)
            outstanding_after = 2*min(5, 15-n)
            e(f"s_waitcnt lgkmcnt({outstanding_after})")
            p = vP + 4*k4
            e(f"v_mfma_f32_32x32x16_bf16 v[{vO+16*dt}:{vO+16*dt+15}], v[{b}:{b+3}], v[{p}:{p+3}], v[{vO+16*dt}:{vO+16*dt+15}]")
            if n + 6 < 16: vread(n + 6)
        if it < 7:
            d = lambda x: (entry(x+4) - entry(x)) * ENT
            sel(sDK, d(4*it), d(4*it+1))
            sel(sDV, d(4*it+2), d(4*it+3))
            for r in range(vKA, vKA+8): e(f"v_add_u32 v{r}, s{sDK}, v{r}")
            for r in range(vVA, vVA+4): e(f"v_add_u32 v{r}, s{sDV}, v{r}")
    stamp()
    e("s_nop 7"); e("s_nop 7")
    e(f"v_mov_b32 v{vT1}, v{vL}")
    e("s_nop 1")
    e(f"v_permlane32_swap_b32 v{vL}, v{vT1}")
    e(f"v_add_f32 v{vL}, v{vL}, v{vT1}")
    e("s_barrier")
    e(f"s_lshl_b32 s{sT0}, s{sW}, 13")
    e(f"s_add_u32 s{sT0}, s{sT0}, 73728")
    e(f"v_add_u32 v{vT4}, s{sT0}, v{vDUMP}")
    e(f"s_xor_b32 s{sT0}, s{sT0}, 0")
    e(f"s_xor_b32 s{sT1}, s{sW}, 4")
    e(f"s_lshl_b32 s{sT0}, s{sT1}, 13")
    e(f"s_add_u32 s{sT0}, s{sT0}, 73728")
    e(f"v_add_u32 v{vT5}, s{sT0}, v{vDUMP}")
    e(f"s_lshl_b32 s{sT0}, s{sW}, 9")
    e(f"s_add_u32 s{sT0}, s{sT0}, 139264")
    e(f"v_lshl_add_u32 v{vT2}, v{vLANE}, 2, s{sT0}")
    e(f"s_lshl_b32 s{sT0}, s{sT1}, 9")
    e(f"s_add_u32 s{sT0}, s{sT0}, 139264")
    e(f"v_lshl_add_u32 v{vT3}, v{vLANE}, 2, s{sT0}")
    e(f"ds_write_b32 v{vT2}, v{vM}")
    e(f"ds_write_b32 v{vT2}, v{vL} offset:256")
    e(f"s_cmp_eq_u32 s{sG}, 0")
    e("s_cbranch_scc1 L_mergeA")
    def merge(keep, give):
        for i in range(8):
            e(f"ds_write_b128 v{vT4}, v[{give+4*i}:{give+4*i+3}] offset:{i*1024}")
        e("s_waitcnt lgkmcnt(0)")
        e("s_barrier")
        e(f"ds_read_b32 v{vT0}, v{vT3}")
        e(f"ds_read_b32 v{vT1}, v{vT3} offset:256")
        for i in range(8):
            e(f"ds_read_b128 v[{vS+4*i}:{vS+4*i+3}], v{vT5} offset:{i*1024}")
        e("s_waitcnt lgkmcnt(8)")
        e(f"v_max_f32 v{vT2}, v{vM}, v{vT0}")
        e(f"v_sub_f32 v{vM}, v{vM}, v{vT2}")
        e(f"v_sub_f32 v{vT0}, v{vT0}, v{vT2}")
        e(f"v_exp_f32 v{vM}, v{vM}")
        e(f"v_exp_f32 v{vT0}, v{vT0}")
        e("s_nop 0")
        e(f"v_mul_f32 v{vL}, v{vL}, v{vM}")
        e(f"v_fma_f32 v{vL}, v{vT1}, v{vT0}, v{vL}")
        e(f"v_rcp_f32 v{vL}, v{vL}")
        e("s_nop 0")
        e(f"v_mul_f32 v{vM}, v{vM}, v{vL}")
        e(f"v_mul_f32 v{vT0}, v{vT0}, v{vL}")
        e("s_waitcnt lgkmcnt(0)")
        for i in range(32):
            o = keep + i
            e(f"v_mul_f32 v{o}, v{o}, v{vM}")
            e(f"v_fma_f32 v{o}, v{vS+i}, v{vT0}, v{o}")
        pk = vQ + (0 if keep == vO else 16)
        other = vQ + (16 if keep == vO else 0)
        for i in range(16):
            e(f"v_cvt_pk_bf16_f32 v{pk+i}, v{keep+2*i}, v{keep+2*i+1}")
        for i in range(4):
            e(f"ds_write_b128 v{vT5}, v[{pk+4*i}:{pk+4*i+3}] offset:{i*1024}")
        e("s_waitcnt lgkmcnt(0)")
        e("s_barrier")
        for i in range(4):
            e(f"ds_read_b128 v[{other+4*i}:{other+4*i+3}], v{vT4} offset:{i*1024}")
        e("s_waitcnt lgkmcnt(0)")
    merge(vO+32, vO)
    e("s_branch L_mergeDone")
    lab("L_mergeA")
    merge(vO, vO+32)
    lab("L_mergeDone")
    e("s_barrier")
    issue_wo(2); issue_wo(3)
    stamp()
    for j in range(8):
        vm.wait([('wo', j)])
        e("s_barrier")
        if j >= 1 and j + 3 < 8: issue_wo(j + 3)
        base = WOSLOT[j % 4]
        e(f"v_add_u32 v{vT0}, {base}, v{vWOA}")
        def wread(n):
            b = vVB + 4*(n % 8)
            e(f"ds_read_b64_tr_b16 v[{b}:{b+1}], v{vT0} offset:{n*64}")
            e(f"ds_read_b64_tr_b16 v[{b+2}:{b+3}], v{vT0} offset:{n*64 + 8*1152}")
        for n in range(7): wread(n)
        for n in range(9):
            b = vVB + 4*(n % 8)
            e(f"s_waitcnt lgkmcnt({2*min(6, 8-n)})")
            c = "0" if j == 0 else f"v[{vACC+16*n}:{vACC+16*n+15}]"
            e(f"v_mfma_f32_32x32x16_bf16 v[{vACC+16*n}:{vACC+16*n+15}], v[{b}:{b+3}], v[{vQ+4*j}:{vQ+4*j+3}], {c}")
            if n + 7 < 9: wread(n + 7)
    e("s_nop 7"); e("s_nop 7")
    e("s_barrier")
    stamp()
    e(f"s_lshl_b32 s{sT0}, s{sQH}, 5")
    e(f"v_add_u32 v{vST}, s{sT0}, v{vR16}")
    e(f"s_movk_i32 s{sT1}, 2320")
    e(f"v_mul_lo_u32 v{vST}, v{vST}, s{sT1}")
    e(f"v_lshl_add_u32 v{vST}, v{vH}, 4, v{vST}")
    e(f"s_mul_i32 s{sT0}, s{sG}, 1152")
    e(f"v_add_u32 v{vST}, s{sT0}, v{vST}")
    e(f"s_cmp_eq_u32 s{sHEAD}, 0")
    e("s_cbranch_scc1 L_head0")
    for i in range(36):
        nt, i4 = divmod(i, 4)
        e(f"ds_write_b128 v{vST}, v[{vACC+4*i}:{vACC+4*i+3}] offset:{nt*128 + i4*32}")
    e("s_waitcnt lgkmcnt(0)")
    e("s_barrier")
    e("s_branch L_headdone")
    lab("L_head0")
    e("s_barrier")
    for i0 in range(0, 36, 6):
        for i in range(i0, i0+6):
            bb = vVB + 4*(i - i0)
            nt, i4 = divmod(i, 4)
            e(f"ds_read_b128 v[{bb}:{bb+3}], v{vST} offset:{nt*128 + i4*32}")
        for i in range(i0, i0+6):
            bb = vVB + 4*(i - i0)
            nt, i4 = divmod(i, 4)
            e(f"s_waitcnt lgkmcnt({5 - (i - i0)})")
            for k in range(4):
                e(f"v_add_f32 v{vACC+4*i+k}, v{vACC+4*i+k}, v{bb+k}")
        for i in range(i0, i0+6):
            nt, i4 = divmod(i, 4)
            e(f"ds_write_b128 v{vST}, v[{vACC+4*i}:{vACC+4*i+3}] offset:{nt*128 + i4*32}")
    e("s_waitcnt lgkmcnt(0)")
    lab("L_headdone")
    e("s_barrier")
    e(f"s_mul_i32 s{sT0}, s{sW}, {8*2320}")
    e(f"v_add_u32 v{vT0}, s{sT0}, v{vDUMP}")
    e(f"s_mul_i32 s{sT1}, s{sW}, {8*2304}")
    for r in range(8):
        for k in range(2):
            bb = vO + 8*r + 4*k
            e(f"ds_read_b128 v[{bb}:{bb+3}], v{vT0} offset:{r*2320 + k*1024}")
    e(f"v_cmp_gt_u32 vcc, 16, v{vLANE}")
    for r in range(8):
        e(f"s_waitcnt lgkmcnt({14 - 2*r})")
        e(f"s_add_u32 s{sT2}, s{sT1}, {r*2304}")
        for k in range(2):
            bb = vO + 8*r + 4*k
            e(f"buffer_store_dwordx4 v[{bb}:{bb+3}], v{vDUMP}, s[{sPT}:{sPT+3}], s{sT2} offen offset:{k*1024} {STF}")
    e("s_and_saveexec_b64 s[44:45], vcc")
    for r in range(8):
        bb = vS + 4*r
        e(f"ds_read_b128 v[{bb}:{bb+3}], v{vT0} offset:{r*2320 + 2048}")
    for r in range(8):
        bb = vS + 4*r
        e(f"s_waitcnt lgkmcnt({7 - r})")
        e(f"s_add_u32 s{sT2}, s{sT1}, {r*2304}")
        e(f"buffer_store_dwordx4 v[{bb}:{bb+3}], v{vDUMP}, s[{sPT}:{sPT+3}], s{sT2} offen offset:2048 {STF}")
    e("s_mov_b64 exec, s[44:45]")
    stamp()
    e("s_waitcnt vmcnt(0)")
    stamp()
    stamp_flush()
    lab("L_attn_done")
    e("s_endpgm")

def gen_reduce():
    lab("red_kernel")
    e("s_cmp_ge_u32 s2, 288")
    e("s_cbranch_scc1 L_red_done")
    e("s_load_dwordx2 s[4:5], s[0:1], 56")
    e("s_load_dwordx2 s[6:7], s[0:1], 40")
    e("s_mov_b32 s8, 0xe38e38f")
    e("s_mul_hi_u32 s9, s2, s8")
    e("s_mul_i32 s10, s9, 18")
    e("s_sub_u32 s10, s2, s10")
    e("s_lshl_b32 s10, s10, 8")
    e("v_add_u32 v1, s10, v0")
    e("v_lshlrev_b32 v2, 5, v1")
    e("v_lshlrev_b32 v3, 4, v1")
    e("s_waitcnt lgkmcnt(0)")
    e("s_mul_i32 s11, s9, 2359296")
    e("s_add_u32 s4, s4, s11")
    e("s_addc_u32 s5, s5, 0")
    e("s_mov_b32 s12, s4"); e("s_and_b32 s13, s5, 0xffff"); e("s_mov_b32 s14, 2359296"); e("s_mov_b32 s15, 0x00020000")
    e("s_mul_i32 s11, s9, 73728")
    e("s_add_u32 s6, s6, s11")
    e("s_addc_u32 s7, s7, 0")
    e("s_mov_b32 s16, s6"); e("s_and_b32 s17, s7, 0xffff"); e("s_mov_b32 s18, 73728"); e("s_mov_b32 s19, 0x00020000")
    for h in range(16):
        e(f"s_mov_b32 s20, {h*147456}")
        e(f"buffer_load_dwordx4 v[{8+8*h}:{8+8*h+3}], v2, s[12:15], s20 offen")
        e(f"buffer_load_dwordx4 v[{12+8*h}:{12+8*h+3}], v2, s[12:15], s20 offen offset:16")
    for h in range(1, 16):
        e(f"s_waitcnt vmcnt({2*(15-h)})")
        for k in range(8):
            e(f"v_add_f32 v{8+k}, v{8+k}, v{8+8*h+k}")
    for k in range(4):
        e(f"v_cvt_pk_bf16_f32 v{4+k}, v{8+2*k}, v{9+2*k}")
    e("buffer_store_dwordx4 v[4:7], v3, s[16:19], 0 offen")
    lab("L_red_done")
    e("s_endpgm")

HDR = """; Fused GQA attention: kernel 1 = Qproj + attention + out-proj partials, kernel 2 = reduce
; @launch kernel=attn_kernel grid=(256,1,1) block=(512,1,1) lds=163840
; @launch kernel=red_kernel grid=(288,1,1) block=(256,1,1) lds=0
.amdgcn_target "amdgcn-amd-amdhsa--gfx950"
.text
"""
def kd(name, nv):
    return f""".amdhsa_kernel {name}
  .amdhsa_next_free_vgpr {nv}
  .amdhsa_next_free_sgpr 100
  .amdhsa_accum_offset {nv}
  .amdhsa_group_segment_fixed_size 0
  .amdhsa_kernarg_size 64
  .amdhsa_user_sgpr_count 2
  .amdhsa_user_sgpr_kernarg_segment_ptr 1
  .amdhsa_system_sgpr_workgroup_id_x 1
.end_amdhsa_kernel
"""
out = [HDR]
for name, g in (("attn_kernel", gen_attn), ("red_kernel", gen_reduce)):
    L.clear()
    out.append(f".globl {name}\n.p2align 8\n.type {name},@function\n")
    g()
    out.append("\n".join(L) + "\n")
out.append('.section .rodata,"a"\n.p2align 6\n')
out.append(kd("attn_kernel", 256))
out.append(".p2align 6\n")
out.append(kd("red_kernel", 136))
open(sys.argv[1] if len(sys.argv) > 1 else "standalone__gqa_block_cached__near_ridge.s", "w").write("".join(out))
```

```python
import sys

L = []
def e(s): L.append("    " + s)
def lab(s): L.append(s + ":")
def cm(s): L.append("    ; " + s)

class VM:
    def __init__(self): self.q = []
    def issue(self, tag): self.q.append(tag)
    def wait(self, tags):
        last = -1
        for i, t in enumerate(self.q):
            if t in tags: last = i
        if last < 0: return
        n = len(self.q) - 1 - last
        assert n <= 63
        e(f"s_waitcnt vmcnt({n})")
        self.q = self.q[last+1:]
vm = VM()
import os
STAMP = os.environ.get("STAMP") == "1"
nst = [0]
def stamp():
    if not STAMP: return
    i = nst[0]; nst[0] += 1
    e("s_memtime s[60:61]")
    e("s_waitcnt lgkmcnt(0)")
    e(f"s_mov_b32 s{64+i}, s60")
def stamp_flush():
    if not STAMP: return
    e("s_cmp_lg_u32 s2, 37")
    e("s_cbranch_scc1 L_nostamp")
    e(f"s_cmp_lg_u32 s{sW}, 0")
    e("s_cbranch_scc1 L_nostamp")
    e("s_load_dwordx2 s[60:61], s[0:1], 48")
    e("s_waitcnt lgkmcnt(0)")
    e("s_mov_b32 s56, s60"); e("s_and_b32 s57, s61, 0xffff"); e("s_mov_b32 s58, 256"); e("s_mov_b32 s59, 0x00020000")
    e("v_mov_b32 v2, 0")
    for i in range(nst[0]):
        e(f"s_sub_u32 s62, s{64+i}, s64")
        e("v_mov_b32 v3, s62")
        e(f"buffer_store_dword v3, v2, s[56:59], 0 offen offset:{4*i}")
    e("s_waitcnt vmcnt(0)")
    lab("L_nostamp")

vLANE = 1
vKA = 2
vVA = 10
vKD = 14
vVD = 15
vM = 16; vL = 17
vT0 = 18; vT1 = 19; vT2 = 20; vT3 = 21; vT4 = 22; vT5 = 23
vQ = 24
vO = 56
vS = 120
vP = 152
vKB = 168
vVB = 200
vX = 56
vWQD = 232
vWQA = 233
vWOD = 236
vWOA = 241
vQW = 242
vDUMP = 243
vST = 244
vH = 245
vR16 = 246
vACC = 56

sK, sV, sWQ, sX, sWO, sPT = 4, 8, 12, 16, 20, 24
sW = 28; sG = 29; sQI = 30; sW1024 = 31
sT0 = 32; sT1 = 33; sT2 = 34; sT3 = 35
sC = 36
sSLOT = 37
sDELTA = 38
sHEAD = 39; sQH = 40

SLOT = 32768
def slot_of(t): return (t + 3) % 5

def srd(s, base_lo, base_hi, nbytes):
    e(f"s_mov_b32 s{s}, s{base_lo}")
    e(f"s_and_b32 s{s+1}, s{base_hi}, 0xffff")
    e(f"s_mov_b32 s{s+2}, {nbytes}")
    e(f"s_mov_b32 s{s+3}, 0x00020000")

def dma(voff, srdreg, soff_expr, m0_const, tag):
    e(f"s_add_u32 m0, s{sW1024}, {m0_const}")
    e(f"s_mov_b32 s{sT3}, {soff_expr}")
    e(f"buffer_load_dwordx4 v{voff}, s[{srdreg}:{srdreg+3}], s{sT3} offen lds")
    vm.issue(tag)

KVF = os.environ.get("KVF", "nt")
STF = os.environ.get("STF", "sc1")
sROT = 41
sDK = 42; sDV = 43
vXA = 247; vXR = 251
ENT = 16384
def entry(item): return (item + 5) % 10
def issue_item(item):
    i, r = divmod(item, 4)
    t = 2*i + (r & 1)
    isV = r >= 2
    sl = entry(item) * ENT
    for k in range(2):
        e(f"s_add_u32 m0, s{sW1024}, {sl + k*8192}")
        e(f"s_add_u32 s{sT3}, s{sROT}, {t*16384 + k*8192}")
        e(f"s_and_b32 s{sT3}, s{sT3}, 0x3ffff")
        vo = vVD if isV else vKD
        sr = sV if isV else sK
        e(f"buffer_load_dwordx4 v{vo}, s[{sr}:{sr+3}], s{sT3} offen {KVF} lds")
        vm.issue(('it', item))

def issue_item_p(item):
    i, r = divmod(item, 4)
    t = 2*i + (r & 1)
    isV = r >= 2
    sl = entry(item) * ENT
    for k in range(4):
        e(f"s_add_u32 m0, s{sW1024}, {sl + k*4096 - 4096}")
        e(f"s_add_u32 s{sT3}, s{sROT}, {t*16384 + k*4096}")
        e(f"s_and_b32 s{sT3}, s{sT3}, 0x3ffff")
        vo = 251 if isV else 250
        sr = sV if isV else sK
        e(f"buffer_load_dwordx4 v{vo}, s[{sr}:{sr+3}], s{sT3} offen lds")
        vm.issue(('it', item))
HC = 20480
def issue_hc_l(j):
    sl = (j % 4) * HC
    for k in range(4):
        dma(vWQD, sWQ, (j*32 + k*8)*8192, sl + k*4096, ('hc', j))
    e(f"s_add_u32 m0, s{sW1024}, {sl + 16384}")
    e(f"s_mov_b32 s{sT3}, {j*64}")
    e(f"buffer_load_dwordx4 v{vXD}, s[{sX}:{sX+3}], s{sT3} offen lds")
    vm.issue(('hc', j))
def issue_hc(j):
    sl = (j % 4) * HC
    for k in range(2):
        dma(vWQD, sWQ, (j*32 + k*16)*8192, sl + k*8192, ('hc', j))
    e(f"s_and_b32 s{sT2}, s{sW1024}, 0xfff")
    e(f"s_add_u32 m0, s{sT2}, {sl + 16384}")
    e(f"s_mov_b32 s{sT3}, {j*64}")
    e(f"buffer_load_dwordx4 v{vXD}, s[{sX}:{sX+3}], s{sT3} offen lds")
    vm.issue(('hc', j))

WOSLOT = [114688, 0, 36864, 73728]
def issue_wo(j):
    sl = WOSLOT[j % 4]
    for k in range(5):
        if k < 4:
            dma(vWOD + k, sWO, j*16*1152, sl + k*8192, ('wo', j))
        else:
            e(f"s_and_b32 s{sT2}, s{sW1024}, 0xfff")
            e(f"s_add_u32 m0, s{sT2}, {sl + 32768}")
            e(f"s_mov_b32 s{sT3}, {j*16*1152}")
            e(f"buffer_load_dwordx4 v{vWOD+4}, s[{sWO}:{sWO+3}], s{sT3} offen lds")
            vm.issue(('wo', j))

def gen_attn():
    lab("attn_kernel")
    e("s_cmp_ge_u32 s2, 256")
    e("s_cbranch_scc1 L_attn_done")
    if os.environ.get("SWAPMAP") == "1":
        e("s_and_b32 s3, s2, 15")
        e("s_lshl_b32 s3, s3, 4")
        e("s_lshr_b32 s2, s2, 4")
        e("s_or_b32 s2, s2, s3")
    e("s_load_dwordx4 s[40:43], s[0:1], 0")
    e("s_load_dwordx4 s[44:47], s[0:1], 16")
    e("s_load_dwordx2 s[48:49], s[0:1], 32")
    e("s_load_dwordx2 s[50:51], s[0:1], 56")
    stamp()
    e(f"v_and_b32 v{vLANE}, 63, v0")
    e(f"v_lshrrev_b32 v{vT0}, 6, v0")
    e("s_nop 0")
    e(f"v_readfirstlane_b32 s{sW}, v{vT0}")
    e("s_nop 3")
    e(f"s_lshr_b32 s{sG}, s{sW}, 2")
    e(f"s_and_b32 s{sQI}, s{sW}, 3")
    e(f"s_lshl_b32 s{sW1024}, s{sW}, 10")
    e(f"s_lshr_b32 s{sHEAD}, s{sQI}, 1")
    e("s_waitcnt lgkmcnt(0)")
    e(f"s_lshl_b32 s{sT0}, s2, 18")
    e(f"s_lshr_b32 s{sT1}, s2, 14")
    e(f"s_add_u32 s42, s42, s{sT0}")
    e(f"s_addc_u32 s43, s43, s{sT1}")
    e(f"s_add_u32 s44, s44, s{sT0}")
    e(f"s_addc_u32 s45, s45, s{sT1}")
    srd(sK, 42, 43, 262144)
    srd(sV, 44, 45, 262144)
    e(f"s_and_b32 s{sT0}, s2, 15")
    e(f"s_lshl_b32 s{sT1}, s{sT0}, 9")
    e(f"s_add_u32 s46, s46, s{sT1}")
    e(f"s_addc_u32 s47, s47, 0")
    srd(sWQ, 46, 47, 0)
    e(f"s_sub_u32 s{sWQ+2}, {576*8192}, s{sT1}")
    e(f"s_lshr_b32 s{sT1}, s2, 4")
    e(f"s_mul_i32 s{sT2}, s{sT1}, 73728")
    e(f"s_add_u32 s40, s40, s{sT2}")
    e(f"s_addc_u32 s41, s41, 0")
    srd(sX, 40, 41, 73728)
    e(f"s_mul_i32 s{sT2}, s{sT0}, {256*1152}")
    e(f"s_add_u32 s48, s48, s{sT2}")
    e(f"s_addc_u32 s49, s49, 0")
    srd(sWO, 48, 49, 256*1152)
    e(f"s_mul_i32 s{sT2}, s2, 147456")
    e(f"s_add_u32 s50, s50, s{sT2}")
    e(f"s_addc_u32 s51, s51, 0")
    srd(sPT, 50, 51, 147456)
    e(f"s_and_b32 s{sQH}, s{sQI}, 1")
    e(f"s_lshr_b32 s{sROT}, s2, 3")
    e(f"s_and_b32 s{sROT}, s{sROT}, 15")
    e(f"s_lshl_b32 s{sROT}, s{sROT}, 14")
    e(f"s_mov_b32 s{sC}, 0x3e0293ee")
    e(f"v_lshrrev_b32 v{vH}, 5, v{vLANE}")
    e(f"v_and_b32 v{vR16}, 31, v{vLANE}")
    e(f"v_lshlrev_b32 v{vDUMP}, 4, v{vLANE}")
    e(f"v_lshrrev_b32 v{vT0}, 3, v{vLANE}")
    e(f"s_lshl_b32 s{sT0}, s{sW}, 3")
    e(f"v_add_u32 v{vT0}, s{sT0}, v{vT0}")
    e(f"v_bfe_u32 v{vT1}, v{vT0}, 1, 3")
    e(f"s_movk_i32 s{sT2}, 1152")
    e(f"v_mul_lo_u32 v{vT0}, v{vT0}, s{sT2}")
    e(f"v_and_b32 v{vT2}, 7, v{vLANE}")
    e(f"v_xor_b32 v{vT1}, v{vT1}, v{vT2}")
    e(f"v_lshl_add_u32 v{vXR}, v{vT1}, 4, v{vT0}")
    e(f"s_lshl_b32 s{sT0}, s{sQH}, 5")
    e(f"v_add_u32 v{vT0}, s{sT0}, v{vR16}")
    e(f"v_bfe_u32 v{vT1}, v{vT0}, 1, 3")
    e(f"v_lshlrev_b32 v{vT0}, 7, v{vT0}")
    e(f"v_add_u32 v{vT0}, 32768, v{vT0}")
    for c4 in range(4):
        e(f"v_or_b32 v{vT2}, {2*c4}, v{vH}")
        e(f"v_xor_b32 v{vT2}, v{vT2}, v{vT1}")
        e(f"v_lshl_add_u32 v{vXA+c4}, v{vT2}, 4, v{vT0}")
    e(f"s_lshl_b32 s{sT0}, s{sW}, 1")
    e(f"v_add_u32 v{vT1}, s{sT0}, v{vH}")
    e(f"v_and_b32 v{vT2}, 3, v{vT1}")
    e(f"v_lshlrev_b32 v{vT2}, 2, v{vT2}")
    e(f"v_xor_b32 v{vT2}, v{vT2}, v{vR16}")
    e(f"v_lshlrev_b32 v{vT2}, 4, v{vT2}")
    e(f"v_lshl_add_u32 v{vWQD}, v{vT1}, 13, v{vT2}")
    e(f"v_lshrrev_b32 v{vT0}, 4, v{vLANE}")
    e(f"v_and_b32 v{vT1}, 15, v{vLANE}")
    e(f"s_lshl_b32 s{sT0}, s{sQI}, 2")
    e(f"v_add_u32 v{vT2}, s{sT0}, v{vT0}")
    e(f"v_xor_b32 v{vT2}, v{vT2}, v{vT1}")
    e(f"v_lshlrev_b32 v{vT2}, 4, v{vT2}")
    e(f"s_lshl_b32 s{sT0}, s{sW}, 2")
    e(f"v_add_u32 v{vT3}, s{sT0}, v{vT0}")
    e(f"v_lshl_add_u32 v{vKD}, v{vT3}, 8, v{vT2}")
    e(f"v_lshlrev_b32 v{vT2}, 2, v{vT0}")
    e(f"v_xor_b32 v{vT2}, v{vT2}, v{vT1}")
    e(f"v_lshlrev_b32 v{vT2}, 4, v{vT2}")
    e(f"v_lshl_add_u32 v{vVD}, v{vT3}, 8, v{vT2}")
    e(f"v_and_b32 v{vT0}, 15, v{vLANE}")
    for ks in range(8):
        e(f"v_or_b32 v{vT1}, {2*ks}, v{vH}")
        e(f"v_xor_b32 v{vT1}, v{vT1}, v{vT0}")
        e(f"v_lshlrev_b32 v{vT1}, 4, v{vT1}")
        e(f"v_lshl_add_u32 v{vKA+ks}, v{vR16}, 8, v{vT1}")
    e(f"v_bfe_u32 v{vT0}, v{vLANE}, 4, 1")
    e(f"v_bfe_u32 v{vT1}, v{vLANE}, 2, 2")
    e(f"v_and_b32 v{vT2}, 3, v{vLANE}")
    e(f"v_lshlrev_b32 v{vT3}, 5, v{vT0}")
    e(f"v_lshl_add_u32 v{vT3}, v{vT2}, 3, v{vT3}")
    e(f"v_lshl_add_u32 v{vT4}, v{vH}, 2, v{vT1}")
    e(f"v_lshl_add_u32 v{vT4}, v{vT4}, 8, v{vT3}")
    for dt in range(4):
        e(f"v_xor_b32 v{vT5}, {dt}, v{vT1}")
        e(f"v_lshl_add_u32 v{vVA+dt}, v{vT5}, 6, v{vT4}")
    e(f"v_lshl_add_u32 v{vT4}, v{vH}, 3, v{vT1}")
    e(f"v_lshl_add_u32 v{vT4}, v{vT4}, 9, v{vT3}")
    e(f"s_lshl_b32 s{sT0}, s{sHEAD}, 2")
    e(f"s_lshl_b32 s{sT1}, s{sG}, 1")
    e(f"s_add_u32 s{sT0}, s{sT0}, s{sT1}")
    for dt in range(2):
        e(f"s_add_u32 s{sT1}, s{sT0}, {dt}")
        e(f"v_xor_b32 v{vT5}, s{sT1}, v{vT1}")
        e(f"v_lshl_add_u32 v{vWQA+dt}, v{vT5}, 6, v{vT4}")
    e(f"s_lshl_b32 s{sT0}, s{sHEAD}, 4")
    e(f"v_lshl_add_u32 v{vT4}, v{vH}, 2, v{vT1}")
    e(f"v_add_u32 v{vT4}, s{sT0}, v{vT4}")
    e(f"s_movk_i32 s{sT1}, 1152")
    e(f"v_mul_lo_u32 v{vT4}, v{vT4}, s{sT1}")
    e(f"s_mul_i32 s{sT0}, s{sG}, 576")
    e(f"v_add3_u32 v{vWOA}, v{vT4}, s{sT0}, v{vT3}")
    for k in range(5):
        if k < 4:
            e(f"s_add_u32 s{sT0}, s{sW1024}, {k*8192}")
        else:
            e(f"s_and_b32 s{sT0}, s{sW1024}, 0xfff")
            e(f"s_add_u32 s{sT0}, s{sT0}, 32768")
        e(f"v_add_u32 v{vT0}, s{sT0}, v{vDUMP}")
        e(f"v_mov_b32 v{vT1}, 18432")
        e(f"v_cmp_ge_u32 vcc, v{vT0}, v{vT1}")
        e(f"v_mov_b32 v{vT2}, 129024")
        e("s_nop 1")
        e(f"v_cndmask_b32 v{vT2}, 0, v{vT2}, vcc")
        e(f"v_add_u32 v{vWOD+k}, v{vT0}, v{vT2}")
    e(f"s_lshl_b32 s{sT0}, s{sQI}, 13")
    e(f"s_add_u32 s{sT0}, s{sT0}, 49152")
    e(f"v_lshlrev_b32 v{vQW}, 8, v{vR16}")
    e(f"v_add_u32 v{vQW}, s{sT0}, v{vQW}")
    e(f"v_lshl_add_u32 v{vQW}, v{vH}, 3, v{vQW}")
    CH = 40960
    def issue_ch(j):
        sl = (j % 2) * CH
        for k in range(4):
            dma(vWQD, sWQ, (j*64 + k*16)*8192, sl + k*8192, ('ch', j))
        dma(vXR, sX, j*128, sl + 32768, ('ch', j))
    issue_ch(0)
    for it_ in range(5): issue_item(it_)
    for j in range(9):
        vm.wait([('ch', j)])
        e("s_barrier")
        if j % 3 == 0: stamp()
        if j + 1 < 9: issue_ch(j + 1)
        base = (j % 2) * CH
        e(f"v_add_u32 v{vT0}, {base}, v{vWQA}")
        e(f"v_add_u32 v{vT1}, {base}, v{vWQA+1}")
        xb = vKB
        for ks in range(4):
            e(f"v_add_u32 v{vT2+ks}, {base}, v{vXA+ks}")
        for ks in range(4):
            e(f"ds_read_b128 v[{xb+4*ks}:{xb+4*ks+3}], v{vT2+ks}")
        WA = [vT0, vT1]
        for n in range(8):
            ks, dt = divmod(n, 2)
            bb = vVB + 4*n
            if n == 5: e("s_waitcnt lgkmcnt(6)")
            e(f"ds_read_b64_tr_b16 v[{bb}:{bb+1}], v{WA[dt]} offset:{ks*8192}")
            e(f"ds_read_b64_tr_b16 v[{bb+2}:{bb+3}], v{WA[dt]} offset:{ks*8192 + 2048}")
        for n in range(8):
            ks, dt = divmod(n, 2)
            bb = vVB + 4*n
            e(f"s_waitcnt lgkmcnt({min(15, 2*(7-n))})")
            x = xb + 4*ks
            c = "0" if (j == 0 and ks == 0) else f"v[{vQ+16*dt}:{vQ+16*dt+15}]"
            e(f"v_mfma_f32_32x32x16_bf16 v[{vQ+16*dt}:{vQ+16*dt+15}], v[{bb}:{bb+3}], v[{x}:{x+3}], {c}")
    e("s_barrier")
    stamp()
    for it_ in range(5, 8): issue_item(it_)
    e("s_nop 7"); e("s_nop 7")
    e(f"v_and_b32 v{vT0}, 15, v{vLANE}")
    for dt in range(2):
        for i4 in range(4):
            a = vQ + 16*dt + 4*i4
            e(f"v_cvt_pk_bf16_f32 v{vT2}, v{a}, v{a+1}")
            e(f"v_cvt_pk_bf16_f32 v{vT3}, v{a+2}, v{a+3}")
            e(f"s_lshl_b32 s{sT0}, s{sG}, 3")
            e(f"s_add_u32 s{sT0}, s{sT0}, {dt*4 + i4}")
            e(f"v_xor_b32 v{vT4}, s{sT0}, v{vT0}")
            e(f"v_lshl_add_u32 v{vT4}, v{vT4}, 4, v{vQW}")
            e(f"ds_write_b64 v{vT4}, v[{vT2}:{vT3}]")
    e("s_waitcnt lgkmcnt(0)")
    e("s_barrier")
    e(f"s_lshl_b32 s{sT0}, s{sQI}, 13")
    e(f"s_add_u32 s{sT0}, s{sT0}, 49152")
    for ks in range(8):
        e(f"v_add_u32 v{vT0}, s{sT0}, v{vKA+ks}")
        e(f"ds_read_b128 v[{vQ+4*ks}:{vQ+4*ks+3}], v{vT0}")
    e(f"v_mov_b32 v{vM}, 0xff7fffff")
    e(f"v_mov_b32 v{vL}, 0")
    for i in range(64): e(f"v_mov_b32 v{vO+i}, 0")
    def sel(sreg, va, vb):
        e(f"s_mov_b32 s{sreg}, {vb}")
        e(f"s_cmp_eq_u32 s{sG}, 0")
        e(f"s_cselect_b32 s{sreg}, {va}, s{sreg}")
    sel(sDK, entry(0)*ENT, entry(1)*ENT)
    sel(sDV, entry(2)*ENT, entry(3)*ENT)
    for r in range(vKA, vKA+8): e(f"v_add_u32 v{r}, s{sDK}, v{r}")
    for r in range(vVA, vVA+4): e(f"v_add_u32 v{r}, s{sDV}, v{r}")
    e("s_waitcnt lgkmcnt(0)")
    for it in range(8):
        cm(f"---- iteration {it} ----")
        stamp()
        vm.wait([('it', 4*it), ('it', 4*it+1)])
        e("s_barrier")
        stamp()
        for item in (4*it+8, 4*it+9):
            if item < 32: issue_item(item)
        if it == 7: issue_wo(1)
        if it == 2:
            e(f"s_lshr_b32 s{sT0}, s2, 4")
            e(f"s_mul_i32 s{sT0}, s{sT0}, 18432")
            e(f"s_add_u32 s{sT0}, s{sT0}, s{sW1024}")
            for k in range(2):
                e(f"buffer_load_dwordx4 v[252:255], v{vDUMP}, s[{sWO}:{sWO+3}], s{sT0} offen")
                vm.issue('pf')
                e(f"s_add_u32 s{sT0}, s{sT0}, 8192")
            e(f"s_and_b32 s{sT1}, s{sW1024}, 0x7ff")
            e(f"s_sub_u32 s{sT0}, s{sT0}, s{sW1024}")
            e(f"s_add_u32 s{sT0}, s{sT0}, s{sT1}")
            e(f"buffer_load_dwordx4 v[252:255], v{vDUMP}, s[{sWO}:{sWO+3}], s{sT0} offen")
            vm.issue('pf')
        def kread(n):
            kvt, ks = divmod(n, 8)
            b = vKB + 4*(n % 8)
            e(f"ds_read_b128 v[{b}:{b+3}], v{vKA+ks} offset:{kvt*8192}")
        for n in range(8): kread(n)
        for n in range(16):
            kvt, ks = divmod(n, 8)
            b = vKB + 4*(n % 8)
            e(f"s_waitcnt lgkmcnt({min(7, 15-n)})")
            c = "0" if ks == 0 else f"v[{vS+16*kvt}:{vS+16*kvt+15}]"
            e(f"v_mfma_f32_32x32x16_bf16 v[{vS+16*kvt}:{vS+16*kvt+15}], v[{b}:{b+3}], v[{vQ+4*ks}:{vQ+4*ks+3}], {c}")
            if n + 8 < 16: kread(n + 8)
        pv = [(k4, dt) for k4 in range(4) for dt in range(4)]
        def vread(n):
            k4, dt = pv[n]
            b = vVB + 4*(n % 8)
            off = k4*16*256
            e(f"ds_read_b64_tr_b16 v[{b}:{b+1}], v{vVA+dt} offset:{off}")
            e(f"ds_read_b64_tr_b16 v[{b+2}:{b+3}], v{vVA+dt} offset:{off + 2048}")
        vm.wait([('it', 4*it+2), ('it', 4*it+3)])
        e("s_barrier")
        for item in (4*it+10, 4*it+11):
            if item < 32: issue_item(item)
        if it == 6: issue_wo(0)
        for n in range(6): vread(n)
        e("s_nop 7")
        e(f"v_max3_f32 v{vT0}, v{vS}, v{vS+1}, v{vS+2}")
        for i in range(3, 31, 2):
            e(f"v_max3_f32 v{vT0}, v{vT0}, v{vS+i}, v{vS+i+1}")
        e(f"v_max_f32 v{vT0}, v{vT0}, v{vS+31}")
        e(f"v_mov_b32 v{vT1}, v{vT0}")
        e("s_nop 1")
        e(f"v_permlane32_swap_b32 v{vT0}, v{vT1}")
        e(f"v_max_f32 v{vT0}, v{vT0}, v{vT1}")
        e(f"v_mul_f32 v{vT0}, s{sC}, v{vT0}")
        e(f"v_max_f32 v{vT0}, v{vT0}, v{vM}")
        e(f"v_sub_f32 v{vT1}, v{vM}, v{vT0}")
        e(f"v_exp_f32 v{vT1}, v{vT1}")
        e(f"v_mov_b32 v{vM}, v{vT0}")
        for i in range(32):
            e(f"v_fma_f32 v{vS+i}, v{vS+i}, s{sC}, -v{vT0}")
        for i in range(32):
            e(f"v_exp_f32 v{vS+i}, v{vS+i}")
        e(f"v_mul_f32 v{vL}, v{vL}, v{vT1}")
        for i in range(64):
            e(f"v_mul_f32 v{vO+i}, v{vO+i}, v{vT1}")
        for i in range(16):
            e(f"v_cvt_pk_bf16_f32 v{vP+i}, v{vS+2*i}, v{vS+2*i+1}")
        e(f"v_add_f32 v{vT2}, v{vS}, v{vS+1}")
        e(f"v_add_f32 v{vT3}, v{vS+2}, v{vS+3}")
        for i in range(4, 32, 2):
            e(f"v_add_f32 v{vT2}, v{vT2}, v{vS+i}")
            e(f"v_add_f32 v{vT3}, v{vT3}, v{vS+i+1}")
        e(f"v_add_f32 v{vL}, v{vL}, v{vT2}")
        e(f"v_add_f32 v{vL}, v{vL}, v{vT3}")
        for n in range(16):
            k4, dt = pv[n]
            b = vVB + 4*(n % 8)
            outstanding_after = 2*min(5, 15-n)
            e(f"s_waitcnt lgkmcnt({outstanding_after})")
            p = vP + 4*k4
            e(f"v_mfma_f32_32x32x16_bf16 v[{vO+16*dt}:{vO+16*dt+15}], v[{b}:{b+3}], v[{p}:{p+3}], v[{vO+16*dt}:{vO+16*dt+15}]")
            if n + 6 < 16: vread(n + 6)
        if it < 7:
            d = lambda x: (entry(x+4) - entry(x)) * ENT
            sel(sDK, d(4*it), d(4*it+1))
            sel(sDV, d(4*it+2), d(4*it+3))
            for r in range(vKA, vKA+8): e(f"v_add_u32 v{r}, s{sDK}, v{r}")
            for r in range(vVA, vVA+4): e(f"v_add_u32 v{r}, s{sDV}, v{r}")
    stamp()
    e("s_nop 7"); e("s_nop 7")
    e(f"v_mov_b32 v{vT1}, v{vL}")
    e("s_nop 1")
    e(f"v_permlane32_swap_b32 v{vL}, v{vT1}")
    e(f"v_add_f32 v{vL}, v{vL}, v{vT1}")
    e("s_barrier")
    e(f"s_lshl_b32 s{sT0}, s{sW}, 13")
    e(f"s_add_u32 s{sT0}, s{sT0}, 36864")
    e(f"v_add_u32 v{vT4}, s{sT0}, v{vDUMP}")
    e(f"s_xor_b32 s{sT0}, s{sT0}, 0")
    e(f"s_xor_b32 s{sT1}, s{sW}, 4")
    e(f"s_lshl_b32 s{sT0}, s{sT1}, 13")
    e(f"s_add_u32 s{sT0}, s{sT0}, 36864")
    e(f"v_add_u32 v{vT5}, s{sT0}, v{vDUMP}")
    e(f"s_lshl_b32 s{sT0}, s{sW}, 9")
    e(f"s_add_u32 s{sT0}, s{sT0}, 102400")
    e(f"v_lshl_add_u32 v{vT2}, v{vLANE}, 2, s{sT0}")
    e(f"s_lshl_b32 s{sT0}, s{sT1}, 9")
    e(f"s_add_u32 s{sT0}, s{sT0}, 102400")
    e(f"v_lshl_add_u32 v{vT3}, v{vLANE}, 2, s{sT0}")
    e(f"ds_write_b32 v{vT2}, v{vM}")
    e(f"ds_write_b32 v{vT2}, v{vL} offset:256")
    e(f"s_cmp_eq_u32 s{sG}, 0")
    e("s_cbranch_scc1 L_mergeA")
    def merge(keep, give):
        for i in range(8):
            e(f"ds_write_b128 v{vT4}, v[{give+4*i}:{give+4*i+3}] offset:{i*1024}")
        e("s_waitcnt lgkmcnt(0)")
        e("s_barrier")
        e(f"ds_read_b32 v{vT0}, v{vT3}")
        e(f"ds_read_b32 v{vT1}, v{vT3} offset:256")
        for i in range(8):
            e(f"ds_read_b128 v[{vS+4*i}:{vS+4*i+3}], v{vT5} offset:{i*1024}")
        e("s_waitcnt lgkmcnt(8)")
        e(f"v_max_f32 v{vT2}, v{vM}, v{vT0}")
        e(f"v_sub_f32 v{vM}, v{vM}, v{vT2}")
        e(f"v_sub_f32 v{vT0}, v{vT0}, v{vT2}")
        e(f"v_exp_f32 v{vM}, v{vM}")
        e(f"v_exp_f32 v{vT0}, v{vT0}")
        e("s_nop 0")
        e(f"v_mul_f32 v{vL}, v{vL}, v{vM}")
        e(f"v_fma_f32 v{vL}, v{vT1}, v{vT0}, v{vL}")
        e(f"v_rcp_f32 v{vL}, v{vL}")
        e("s_nop 0")
        e(f"v_mul_f32 v{vM}, v{vM}, v{vL}")
        e(f"v_mul_f32 v{vT0}, v{vT0}, v{vL}")
        e("s_waitcnt lgkmcnt(0)")
        for i in range(32):
            o = keep + i
            e(f"v_mul_f32 v{o}, v{o}, v{vM}")
            e(f"v_fma_f32 v{o}, v{vS+i}, v{vT0}, v{o}")
        pk = vQ + (0 if keep == vO else 16)
        other = vQ + (16 if keep == vO else 0)
        for i in range(16):
            e(f"v_cvt_pk_bf16_f32 v{pk+i}, v{keep+2*i}, v{keep+2*i+1}")
        for i in range(4):
            e(f"ds_write_b128 v{vT5}, v[{pk+4*i}:{pk+4*i+3}] offset:{i*1024}")
        e("s_waitcnt lgkmcnt(0)")
        e("s_barrier")
        for i in range(4):
            e(f"ds_read_b128 v[{other+4*i}:{other+4*i+3}], v{vT4} offset:{i*1024}")
        e("s_waitcnt lgkmcnt(0)")
    merge(vO+32, vO)
    e("s_branch L_mergeDone")
    lab("L_mergeA")
    merge(vO, vO+32)
    lab("L_mergeDone")
    e("s_barrier")
    issue_wo(2); issue_wo(3)
    stamp()
    for j in range(8):
        vm.wait([('wo', j)])
        e("s_barrier")
        if j >= 1 and j + 3 < 8: issue_wo(j + 3)
        base = WOSLOT[j % 4]
        e(f"v_add_u32 v{vT0}, {base}, v{vWOA}")
        def wread(n):
            b = vVB + 4*(n % 8)
            e(f"ds_read_b64_tr_b16 v[{b}:{b+1}], v{vT0} offset:{n*64}")
            e(f"ds_read_b64_tr_b16 v[{b+2}:{b+3}], v{vT0} offset:{n*64 + 8*1152}")
        for n in range(7): wread(n)
        for n in range(9):
            b = vVB + 4*(n % 8)
            e(f"s_waitcnt lgkmcnt({2*min(6, 8-n)})")
            c = "0" if j == 0 else f"v[{vACC+16*n}:{vACC+16*n+15}]"
            e(f"v_mfma_f32_32x32x16_bf16 v[{vACC+16*n}:{vACC+16*n+15}], v[{b}:{b+3}], v[{vQ+4*j}:{vQ+4*j+3}], {c}")
            if n + 7 < 9: wread(n + 7)
    e("s_nop 7"); e("s_nop 7")
    e("s_barrier")
    stamp()
    e(f"s_lshl_b32 s{sT0}, s{sQH}, 5")
    e(f"v_add_u32 v{vST}, s{sT0}, v{vR16}")
    e(f"s_movk_i32 s{sT1}, 2320")
    e(f"v_mul_lo_u32 v{vST}, v{vST}, s{sT1}")
    e(f"v_lshl_add_u32 v{vST}, v{vH}, 4, v{vST}")
    e(f"s_mul_i32 s{sT0}, s{sG}, 1152")
    e(f"v_add_u32 v{vST}, s{sT0}, v{vST}")
    e(f"s_cmp_eq_u32 s{sHEAD}, 0")
    e("s_cbranch_scc1 L_head0")
    for i in range(36):
        nt, i4 = divmod(i, 4)
        e(f"ds_write_b128 v{vST}, v[{vACC+4*i}:{vACC+4*i+3}] offset:{nt*128 + i4*32}")
    e("s_waitcnt lgkmcnt(0)")
    e("s_barrier")
    e("s_branch L_headdone")
    lab("L_head0")
    e("s_barrier")
    for i0 in range(0, 36, 6):
        for i in range(i0, i0+6):
            bb = vVB + 4*(i - i0)
            nt, i4 = divmod(i, 4)
            e(f"ds_read_b128 v[{bb}:{bb+3}], v{vST} offset:{nt*128 + i4*32}")
        for i in range(i0, i0+6):
            bb = vVB + 4*(i - i0)
            nt, i4 = divmod(i, 4)
            e(f"s_waitcnt lgkmcnt({5 - (i - i0)})")
            for k in range(4):
                e(f"v_add_f32 v{vACC+4*i+k}, v{vACC+4*i+k}, v{bb+k}")
        for i in range(i0, i0+6):
            nt, i4 = divmod(i, 4)
            e(f"ds_write_b128 v{vST}, v[{vACC+4*i}:{vACC+4*i+3}] offset:{nt*128 + i4*32}")
    e("s_waitcnt lgkmcnt(0)")
    lab("L_headdone")
    e("s_barrier")
    e(f"s_mul_i32 s{sT0}, s{sW}, {8*2320}")
    e(f"v_add_u32 v{vT0}, s{sT0}, v{vDUMP}")
    e(f"s_mul_i32 s{sT1}, s{sW}, {8*2304}")
    for r in range(8):
        for k in range(2):
            bb = vO + 8*r + 4*k
            e(f"ds_read_b128 v[{bb}:{bb+3}], v{vT0} offset:{r*2320 + k*1024}")
    e(f"v_cmp_gt_u32 vcc, 16, v{vLANE}")
    for r in range(8):
        e(f"s_waitcnt lgkmcnt({14 - 2*r})")
        e(f"s_add_u32 s{sT2}, s{sT1}, {r*2304}")
        for k in range(2):
            bb = vO + 8*r + 4*k
            e(f"buffer_store_dwordx4 v[{bb}:{bb+3}], v{vDUMP}, s[{sPT}:{sPT+3}], s{sT2} offen offset:{k*1024} {STF}")
    e("s_and_saveexec_b64 s[44:45], vcc")
    for r in range(8):
        bb = vS + 4*r
        e(f"ds_read_b128 v[{bb}:{bb+3}], v{vT0} offset:{r*2320 + 2048}")
    for r in range(8):
        bb = vS + 4*r
        e(f"s_waitcnt lgkmcnt({7 - r})")
        e(f"s_add_u32 s{sT2}, s{sT1}, {r*2304}")
        e(f"buffer_store_dwordx4 v[{bb}:{bb+3}], v{vDUMP}, s[{sPT}:{sPT+3}], s{sT2} offen offset:2048 {STF}")
    e("s_mov_b64 exec, s[44:45]")
    stamp()
    e("s_waitcnt vmcnt(0)")
    stamp()
    stamp_flush()
    lab("L_attn_done")
    e("s_endpgm")

def gen_reduce():
    lab("red_kernel")
    e("s_cmp_ge_u32 s2, 288")
    e("s_cbranch_scc1 L_red_done")
    e("s_load_dwordx2 s[4:5], s[0:1], 56")
    e("s_load_dwordx2 s[6:7], s[0:1], 40")
    e("s_mov_b32 s8, 0xe38e38f")
    e("s_mul_hi_u32 s9, s2, s8")
    e("s_mul_i32 s10, s9, 18")
    e("s_sub_u32 s10, s2, s10")
    e("s_lshl_b32 s10, s10, 8")
    e("v_add_u32 v1, s10, v0")
    e("v_lshlrev_b32 v2, 5, v1")
    e("v_lshlrev_b32 v3, 4, v1")
    e("s_waitcnt lgkmcnt(0)")
    e("s_mul_i32 s11, s9, 2359296")
    e("s_add_u32 s4, s4, s11")
    e("s_addc_u32 s5, s5, 0")
    e("s_mov_b32 s12, s4"); e("s_and_b32 s13, s5, 0xffff"); e("s_mov_b32 s14, 2359296"); e("s_mov_b32 s15, 0x00020000")
    e("s_mul_i32 s11, s9, 73728")
    e("s_add_u32 s6, s6, s11")
    e("s_addc_u32 s7, s7, 0")
    e("s_mov_b32 s16, s6"); e("s_and_b32 s17, s7, 0xffff"); e("s_mov_b32 s18, 73728"); e("s_mov_b32 s19, 0x00020000")
    for h in range(16):
        e(f"s_mov_b32 s20, {h*147456}")
        e(f"buffer_load_dwordx4 v[{8+8*h}:{8+8*h+3}], v2, s[12:15], s20 offen")
        e(f"buffer_load_dwordx4 v[{12+8*h}:{12+8*h+3}], v2, s[12:15], s20 offen offset:16")
    for h in range(1, 16):
        e(f"s_waitcnt vmcnt({2*(15-h)})")
        for k in range(8):
            e(f"v_add_f32 v{8+k}, v{8+k}, v{8+8*h+k}")
    for k in range(4):
        e(f"v_cvt_pk_bf16_f32 v{4+k}, v{8+2*k}, v{9+2*k}")
    e("buffer_store_dwordx4 v[4:7], v3, s[16:19], 0 offen")
    lab("L_red_done")
    e("s_endpgm")

HDR = """; Fused GQA attention: kernel 1 = Qproj + attention + out-proj partials, kernel 2 = reduce
; @launch kernel=attn_kernel grid=(256,1,1) block=(512,1,1) lds=163840
; @launch kernel=red_kernel grid=(288,1,1) block=(256,1,1) lds=0
.amdgcn_target "amdgcn-amd-amdhsa--gfx950"
.text
"""
def kd(name, nv):
    return f""".amdhsa_kernel {name}
  .amdhsa_next_free_vgpr {nv}
  .amdhsa_next_free_sgpr 100
  .amdhsa_accum_offset {nv}
  .amdhsa_group_segment_fixed_size 0
  .amdhsa_kernarg_size 64
  .amdhsa_user_sgpr_count 2
  .amdhsa_user_sgpr_kernarg_segment_ptr 1
  .amdhsa_system_sgpr_workgroup_id_x 1
.end_amdhsa_kernel
"""
out = [HDR]
for name, g in (("attn_kernel", gen_attn), ("red_kernel", gen_reduce)):
    L.clear()
    out.append(f".globl {name}\n.p2align 8\n.type {name},@function\n")
    g()
    out.append("\n".join(L) + "\n")
out.append('.section .rodata,"a"\n.p2align 6\n')
out.append(kd("attn_kernel", 256))
out.append(".p2align 6\n")
out.append(kd("red_kernel", 136))
open(sys.argv[1] if len(sys.argv) > 1 else "standalone__gqa_block_cached__near_ridge.s", "w").write("".join(out))
```

```python
import sys

L = []
def e(s): L.append("    " + s)
def lab(s): L.append(s + ":")
def cm(s): L.append("    ; " + s)

class VM:
    def __init__(self): self.q = []
    def issue(self, tag): self.q.append(tag)
    def wait(self, tags):
        last = -1
        for i, t in enumerate(self.q):
            if t in tags: last = i
        if last < 0: return
        n = len(self.q) - 1 - last
        assert n <= 63
        e(f"s_waitcnt vmcnt({n})")
        self.q = self.q[last+1:]
vm = VM()
import os
STAMP = os.environ.get("STAMP") == "1"
nst = [0]
def stamp():
    if not STAMP: return
    i = nst[0]; nst[0] += 1
    e("s_memtime s[60:61]")
    e("s_waitcnt lgkmcnt(0)")
    e(f"s_mov_b32 s{64+i}, s60")
def stamp_flush():
    if not STAMP: return
    e("s_cmp_lg_u32 s2, 37")
    e("s_cbranch_scc1 L_nostamp")
    e(f"s_cmp_lg_u32 s{sW}, 0")
    e("s_cbranch_scc1 L_nostamp")
    e("s_load_dwordx2 s[60:61], s[0:1], 48")
    e("s_waitcnt lgkmcnt(0)")
    e("s_mov_b32 s56, s60"); e("s_and_b32 s57, s61, 0xffff"); e("s_mov_b32 s58, 256"); e("s_mov_b32 s59, 0x00020000")
    e("v_mov_b32 v2, 0")
    for i in range(nst[0]):
        e(f"s_sub_u32 s62, s{64+i}, s64")
        e("v_mov_b32 v3, s62")
        e(f"buffer_store_dword v3, v2, s[56:59], 0 offen offset:{4*i}")
    e("s_waitcnt vmcnt(0)")
    lab("L_nostamp")

vLANE = 1
vKA = 2
vVA = 10
vKD = 14
vVD = 15
vM = 16; vL = 17
vT0 = 18; vT1 = 19; vT2 = 20; vT3 = 21; vT4 = 22; vT5 = 23
vQ = 24
vO = 56
vS = 120
vP = 152
vKB = 168
vVB = 200
vX = 56
vWQD = 232
vWQA = 233
vWOD = 236
vWOA = 241
vQW = 242
vDUMP = 243
vST = 244
vH = 245
vR16 = 246
vACC = 56

sK, sV, sWQ, sX, sWO, sPT = 4, 8, 12, 16, 20, 24
sW = 28; sG = 29; sQI = 30; sW1024 = 31
sT0 = 32; sT1 = 33; sT2 = 34; sT3 = 35
sC = 36
sSLOT = 37
sDELTA = 38
sHEAD = 39; sQH = 40

SLOT = 32768
def slot_of(t): return (t + 3) % 5

def srd(s, base_lo, base_hi, nbytes):
    e(f"s_mov_b32 s{s}, s{base_lo}")
    e(f"s_and_b32 s{s+1}, s{base_hi}, 0xffff")
    e(f"s_mov_b32 s{s+2}, {nbytes}")
    e(f"s_mov_b32 s{s+3}, 0x00020000")

def dma(voff, srdreg, soff_expr, m0_const, tag):
    e(f"s_add_u32 m0, s{sW1024}, {m0_const}")
    e(f"s_mov_b32 s{sT3}, {soff_expr}")
    e(f"buffer_load_dwordx4 v{voff}, s[{srdreg}:{srdreg+3}], s{sT3} offen lds")
    vm.issue(tag)

KVF = os.environ.get("KVF", "nt")
STF = os.environ.get("STF", "sc1")
sROT = 41
sDK = 42; sDV = 43
vXA = 247; vXR = 251
ENT = 16384
def entry(item): return (item + 8) % 10
def issue_item(item):
    i, r = divmod(item, 4)
    t = 2*i + (r & 1)
    isV = r >= 2
    sl = entry(item) * ENT
    for k in range(2):
        e(f"s_add_u32 m0, s{sW1024}, {sl + k*8192}")
        e(f"s_add_u32 s{sT3}, s{sROT}, {t*16384 + k*8192}")
        e(f"s_and_b32 s{sT3}, s{sT3}, 0x3ffff")
        vo = vVD if isV else vKD
        sr = sV if isV else sK
        e(f"buffer_load_dwordx4 v{vo}, s[{sr}:{sr+3}], s{sT3} offen {KVF} lds")
        vm.issue(('it', item))

def issue_item_p(item):
    i, r = divmod(item, 4)
    t = 2*i + (r & 1)
    isV = r >= 2
    sl = entry(item) * ENT
    for k in range(4):
        e(f"s_add_u32 m0, s{sW1024}, {sl + k*4096 - 4096}")
        e(f"s_add_u32 s{sT3}, s{sROT}, {t*16384 + k*4096}")
        e(f"s_and_b32 s{sT3}, s{sT3}, 0x3ffff")
        vo = 251 if isV else 250
        sr = sV if isV else sK
        e(f"buffer_load_dwordx4 v{vo}, s[{sr}:{sr+3}], s{sT3} offen lds")
        vm.issue(('it', item))
HC = 20480
def issue_hc_l(j):
    sl = (j % 4) * HC
    for k in range(4):
        dma(vWQD, sWQ, (j*32 + k*8)*8192, sl + k*4096, ('hc', j))
    e(f"s_add_u32 m0, s{sW1024}, {sl + 16384}")
    e(f"s_mov_b32 s{sT3}, {j*64}")
    e(f"buffer_load_dwordx4 v{vXD}, s[{sX}:{sX+3}], s{sT3} offen lds")
    vm.issue(('hc', j))
def issue_hc(j):
    sl = (j % 4) * HC
    for k in range(2):
        dma(vWQD, sWQ, (j*32 + k*16)*8192, sl + k*8192, ('hc', j))
    e(f"s_and_b32 s{sT2}, s{sW1024}, 0xfff")
    e(f"s_add_u32 m0, s{sT2}, {sl + 16384}")
    e(f"s_mov_b32 s{sT3}, {j*64}")
    e(f"buffer_load_dwordx4 v{vXD}, s[{sX}:{sX+3}], s{sT3} offen lds")
    vm.issue(('hc', j))

WOSLOT = [0, 36864, 73728, 110592]
def issue_wo(j):
    sl = WOSLOT[j % 4]
    for k in range(5):
        if k < 4:
            dma(vWOD + k, sWO, j*16*1152, sl + k*8192, ('wo', j))
        else:
            e(f"s_and_b32 s{sT2}, s{sW1024}, 0xfff")
            e(f"s_add_u32 m0, s{sT2}, {sl + 32768}")
            e(f"s_mov_b32 s{sT3}, {j*16*1152}")
            e(f"buffer_load_dwordx4 v{vWOD+4}, s[{sWO}:{sWO+3}], s{sT3} offen lds")
            vm.issue(('wo', j))

def gen_attn():
    lab("attn_kernel")
    e("s_cmp_ge_u32 s2, 256")
    e("s_cbranch_scc1 L_attn_done")
    if os.environ.get("SWAPMAP") == "1":
        e("s_and_b32 s3, s2, 15")
        e("s_lshl_b32 s3, s3, 4")
        e("s_lshr_b32 s2, s2, 4")
        e("s_or_b32 s2, s2, s3")
    e("s_load_dwordx4 s[40:43], s[0:1], 0")
    e("s_load_dwordx4 s[44:47], s[0:1], 16")
    e("s_load_dwordx2 s[48:49], s[0:1], 32")
    e("s_load_dwordx2 s[50:51], s[0:1], 56")
    stamp()
    e(f"v_and_b32 v{vLANE}, 63, v0")
    e(f"v_lshrrev_b32 v{vT0}, 6, v0")
    e("s_nop 0")
    e(f"v_readfirstlane_b32 s{sW}, v{vT0}")
    e("s_nop 3")
    e(f"s_lshr_b32 s{sG}, s{sW}, 2")
    e(f"s_and_b32 s{sQI}, s{sW}, 3")
    e(f"s_lshl_b32 s{sW1024}, s{sW}, 10")
    e(f"s_lshr_b32 s{sHEAD}, s{sQI}, 1")
    e("s_waitcnt lgkmcnt(0)")
    e(f"s_lshl_b32 s{sT0}, s2, 18")
    e(f"s_lshr_b32 s{sT1}, s2, 14")
    e(f"s_add_u32 s42, s42, s{sT0}")
    e(f"s_addc_u32 s43, s43, s{sT1}")
    e(f"s_add_u32 s44, s44, s{sT0}")
    e(f"s_addc_u32 s45, s45, s{sT1}")
    srd(sK, 42, 43, 262144)
    srd(sV, 44, 45, 262144)
    e(f"s_and_b32 s{sT0}, s2, 15")
    e(f"s_lshl_b32 s{sT1}, s{sT0}, 9")
    e(f"s_add_u32 s46, s46, s{sT1}")
    e(f"s_addc_u32 s47, s47, 0")
    srd(sWQ, 46, 47, 0)
    e(f"s_sub_u32 s{sWQ+2}, {576*8192}, s{sT1}")
    e(f"s_lshr_b32 s{sT1}, s2, 4")
    e(f"s_mul_i32 s{sT2}, s{sT1}, 73728")
    e(f"s_add_u32 s40, s40, s{sT2}")
    e(f"s_addc_u32 s41, s41, 0")
    srd(sX, 40, 41, 73728)
    e(f"s_mul_i32 s{sT2}, s{sT0}, {256*1152}")
    e(f"s_add_u32 s48, s48, s{sT2}")
    e(f"s_addc_u32 s49, s49, 0")
    srd(sWO, 48, 49, 256*1152)
    e(f"s_mul_i32 s{sT2}, s2, 73728")
    e(f"s_add_u32 s50, s50, s{sT2}")
    e(f"s_addc_u32 s51, s51, 0")
    srd(sPT, 50, 51, 73728)
    e(f"s_and_b32 s{sQH}, s{sQI}, 1")
    e(f"s_lshr_b32 s{sROT}, s2, 3")
    e(f"s_and_b32 s{sROT}, s{sROT}, 15")
    e(f"s_lshl_b32 s{sROT}, s{sROT}, 14")
    e(f"s_mov_b32 s{sC}, 0x3e0293ee")
    e(f"v_lshrrev_b32 v{vH}, 5, v{vLANE}")
    e(f"v_and_b32 v{vR16}, 31, v{vLANE}")
    e(f"v_lshlrev_b32 v{vDUMP}, 4, v{vLANE}")
    e(f"v_lshrrev_b32 v{vT0}, 3, v{vLANE}")
    e(f"s_lshl_b32 s{sT0}, s{sW}, 3")
    e(f"v_add_u32 v{vT0}, s{sT0}, v{vT0}")
    e(f"v_bfe_u32 v{vT1}, v{vT0}, 1, 3")
    e(f"s_movk_i32 s{sT2}, 1152")
    e(f"v_mul_lo_u32 v{vT0}, v{vT0}, s{sT2}")
    e(f"v_and_b32 v{vT2}, 7, v{vLANE}")
    e(f"v_xor_b32 v{vT1}, v{vT1}, v{vT2}")
    e(f"v_lshl_add_u32 v{vXR}, v{vT1}, 4, v{vT0}")
    e(f"s_lshl_b32 s{sT0}, s{sQH}, 5")
    e(f"v_add_u32 v{vT0}, s{sT0}, v{vR16}")
    e(f"v_bfe_u32 v{vT1}, v{vT0}, 1, 3")
    e(f"v_lshlrev_b32 v{vT0}, 7, v{vT0}")
    e(f"v_add_u32 v{vT0}, 32768, v{vT0}")
    for c4 in range(4):
        e(f"v_or_b32 v{vT2}, {2*c4}, v{vH}")
        e(f"v_xor_b32 v{vT2}, v{vT2}, v{vT1}")
        e(f"v_lshl_add_u32 v{vXA+c4}, v{vT2}, 4, v{vT0}")
    e(f"s_lshl_b32 s{sT0}, s{sW}, 1")
    e(f"v_add_u32 v{vT1}, s{sT0}, v{vH}")
    e(f"v_and_b32 v{vT2}, 3, v{vT1}")
    e(f"v_lshlrev_b32 v{vT2}, 2, v{vT2}")
    e(f"v_xor_b32 v{vT2}, v{vT2}, v{vR16}")
    e(f"v_lshlrev_b32 v{vT2}, 4, v{vT2}")
    e(f"v_lshl_add_u32 v{vWQD}, v{vT1}, 13, v{vT2}")
    e(f"v_lshrrev_b32 v{vT0}, 4, v{vLANE}")
    e(f"v_and_b32 v{vT1}, 15, v{vLANE}")
    e(f"s_lshl_b32 s{sT0}, s{sQI}, 2")
    e(f"v_add_u32 v{vT2}, s{sT0}, v{vT0}")
    e(f"v_xor_b32 v{vT2}, v{vT2}, v{vT1}")
    e(f"v_lshlrev_b32 v{vT2}, 4, v{vT2}")
    e(f"s_lshl_b32 s{sT0}, s{sW}, 2")
    e(f"v_add_u32 v{vT3}, s{sT0}, v{vT0}")
    e(f"v_lshl_add_u32 v{vKD}, v{vT3}, 8, v{vT2}")
    e(f"v_lshlrev_b32 v{vT2}, 2, v{vT0}")
    e(f"v_xor_b32 v{vT2}, v{vT2}, v{vT1}")
    e(f"v_lshlrev_b32 v{vT2}, 4, v{vT2}")
    e(f"v_lshl_add_u32 v{vVD}, v{vT3}, 8, v{vT2}")
    e(f"v_and_b32 v{vT0}, 15, v{vLANE}")
    for ks in range(8):
        e(f"v_or_b32 v{vT1}, {2*ks}, v{vH}")
        e(f"v_xor_b32 v{vT1}, v{vT1}, v{vT0}")
        e(f"v_lshlrev_b32 v{vT1}, 4, v{vT1}")
        e(f"v_lshl_add_u32 v{vKA+ks}, v{vR16}, 8, v{vT1}")
    e(f"v_bfe_u32 v{vT0}, v{vLANE}, 4, 1")
    e(f"v_bfe_u32 v{vT1}, v{vLANE}, 2, 2")
    e(f"v_and_b32 v{vT2}, 3, v{vLANE}")
    e(f"v_lshlrev_b32 v{vT3}, 5, v{vT0}")
    e(f"v_lshl_add_u32 v{vT3}, v{vT2}, 3, v{vT3}")
    e(f"v_lshl_add_u32 v{vT4}, v{vH}, 2, v{vT1}")
    e(f"v_lshl_add_u32 v{vT4}, v{vT4}, 8, v{vT3}")
    for dt in range(4):
        e(f"v_xor_b32 v{vT5}, {dt}, v{vT1}")
        e(f"v_lshl_add_u32 v{vVA+dt}, v{vT5}, 6, v{vT4}")
    e(f"v_lshl_add_u32 v{vT4}, v{vH}, 3, v{vT1}")
    e(f"v_lshl_add_u32 v{vT4}, v{vT4}, 9, v{vT3}")
    e(f"s_lshl_b32 s{sT0}, s{sHEAD}, 2")
    e(f"s_lshl_b32 s{sT1}, s{sG}, 1")
    e(f"s_add_u32 s{sT0}, s{sT0}, s{sT1}")
    for dt in range(2):
        e(f"s_add_u32 s{sT1}, s{sT0}, {dt}")
        e(f"v_xor_b32 v{vT5}, s{sT1}, v{vT1}")
        e(f"v_lshl_add_u32 v{vWQA+dt}, v{vT5}, 6, v{vT4}")
    e(f"s_lshl_b32 s{sT0}, s{sHEAD}, 4")
    e(f"v_lshl_add_u32 v{vT4}, v{vH}, 2, v{vT1}")
    e(f"v_add_u32 v{vT4}, s{sT0}, v{vT4}")
    e(f"s_movk_i32 s{sT1}, 1152")
    e(f"v_mul_lo_u32 v{vT4}, v{vT4}, s{sT1}")
    e(f"s_mul_i32 s{sT0}, s{sG}, 576")
    e(f"v_add3_u32 v{vWOA}, v{vT4}, s{sT0}, v{vT3}")
    for k in range(5):
        if k < 4:
            e(f"s_add_u32 s{sT0}, s{sW1024}, {k*8192}")
        else:
            e(f"s_and_b32 s{sT0}, s{sW1024}, 0xfff")
            e(f"s_add_u32 s{sT0}, s{sT0}, 32768")
        e(f"v_add_u32 v{vT0}, s{sT0}, v{vDUMP}")
        e(f"v_mov_b32 v{vT1}, 18432")
        e(f"v_cmp_ge_u32 vcc, v{vT0}, v{vT1}")
        e(f"v_mov_b32 v{vT2}, 129024")
        e("s_nop 1")
        e(f"v_cndmask_b32 v{vT2}, 0, v{vT2}, vcc")
        e(f"v_add_u32 v{vWOD+k}, v{vT0}, v{vT2}")
    e(f"s_lshl_b32 s{sT0}, s{sQI}, 13")
    e(f"s_add_u32 s{sT0}, s{sT0}, 98304")
    e(f"v_lshlrev_b32 v{vQW}, 8, v{vR16}")
    e(f"v_add_u32 v{vQW}, s{sT0}, v{vQW}")
    e(f"v_lshl_add_u32 v{vQW}, v{vH}, 3, v{vQW}")
    CH = 40960
    def issue_ch(j):
        sl = (j % 3) * CH
        for k in range(4):
            dma(vWQD, sWQ, (j*64 + k*16)*8192, sl + k*8192, ('ch', j))
        dma(vXR, sX, j*128, sl + 32768, ('ch', j))
    issue_ch(0); issue_ch(1)
    issue_item(0); issue_item(1)
    for j in range(9):
        vm.wait([('ch', j)])
        e("s_barrier")
        if j % 3 == 0: stamp()
        if j + 2 < 9: issue_ch(j + 2)
        base = (j % 3) * CH
        e(f"v_add_u32 v{vT0}, {base}, v{vWQA}")
        e(f"v_add_u32 v{vT1}, {base}, v{vWQA+1}")
        xb = vKB
        for ks in range(4):
            e(f"v_add_u32 v{vT2+ks}, {base}, v{vXA+ks}")
        for ks in range(4):
            e(f"ds_read_b128 v[{xb+4*ks}:{xb+4*ks+3}], v{vT2+ks}")
        WA = [vT0, vT1]
        for n in range(8):
            ks, dt = divmod(n, 2)
            bb = vVB + 4*n
            if n == 5: e("s_waitcnt lgkmcnt(6)")
            e(f"ds_read_b64_tr_b16 v[{bb}:{bb+1}], v{WA[dt]} offset:{ks*8192}")
            e(f"ds_read_b64_tr_b16 v[{bb+2}:{bb+3}], v{WA[dt]} offset:{ks*8192 + 2048}")
        for n in range(8):
            ks, dt = divmod(n, 2)
            bb = vVB + 4*n
            e(f"s_waitcnt lgkmcnt({min(15, 2*(7-n))})")
            x = xb + 4*ks
            c = "0" if (j == 0 and ks == 0) else f"v[{vQ+16*dt}:{vQ+16*dt+15}]"
            e(f"v_mfma_f32_32x32x16_bf16 v[{vQ+16*dt}:{vQ+16*dt+15}], v[{bb}:{bb+3}], v[{x}:{x+3}], {c}")
    e("s_barrier")
    stamp()
    for it_ in range(2, 8): issue_item(it_)
    e("s_nop 7"); e("s_nop 7")
    e(f"v_and_b32 v{vT0}, 15, v{vLANE}")
    for dt in range(2):
        for i4 in range(4):
            a = vQ + 16*dt + 4*i4
            e(f"v_cvt_pk_bf16_f32 v{vT2}, v{a}, v{a+1}")
            e(f"v_cvt_pk_bf16_f32 v{vT3}, v{a+2}, v{a+3}")
            e(f"s_lshl_b32 s{sT0}, s{sG}, 3")
            e(f"s_add_u32 s{sT0}, s{sT0}, {dt*4 + i4}")
            e(f"v_xor_b32 v{vT4}, s{sT0}, v{vT0}")
            e(f"v_lshl_add_u32 v{vT4}, v{vT4}, 4, v{vQW}")
            e(f"ds_write_b64 v{vT4}, v[{vT2}:{vT3}]")
    e("s_waitcnt lgkmcnt(0)")
    e("s_barrier")
    e(f"s_lshl_b32 s{sT0}, s{sQI}, 13")
    e(f"s_add_u32 s{sT0}, s{sT0}, 98304")
    for ks in range(8):
        e(f"v_add_u32 v{vT0}, s{sT0}, v{vKA+ks}")
        e(f"ds_read_b128 v[{vQ+4*ks}:{vQ+4*ks+3}], v{vT0}")
    e(f"v_mov_b32 v{vM}, 0xff7fffff")
    e(f"v_mov_b32 v{vL}, 0")
    for i in range(64): e(f"v_mov_b32 v{vO+i}, 0")
    def sel(sreg, va, vb):
        e(f"s_mov_b32 s{sreg}, {vb}")
        e(f"s_cmp_eq_u32 s{sG}, 0")
        e(f"s_cselect_b32 s{sreg}, {va}, s{sreg}")
    sel(sDK, entry(0)*ENT, entry(1)*ENT)
    sel(sDV, entry(2)*ENT, entry(3)*ENT)
    for r in range(vKA, vKA+8): e(f"v_add_u32 v{r}, s{sDK}, v{r}")
    for r in range(vVA, vVA+4): e(f"v_add_u32 v{r}, s{sDV}, v{r}")
    e("s_waitcnt lgkmcnt(0)")
    for it in range(8):
        cm(f"---- iteration {it} ----")
        stamp()
        vm.wait([('it', 4*it), ('it', 4*it+1)])
        e("s_barrier")
        stamp()
        for item in (4*it+8, 4*it+9):
            if item < 32: issue_item(item)
        if it == 7: issue_wo(1)
        if it == 2:
            e(f"s_lshr_b32 s{sT0}, s2, 4")
            e(f"s_mul_i32 s{sT0}, s{sT0}, 18432")
            e(f"s_add_u32 s{sT0}, s{sT0}, s{sW1024}")
            for k in range(2):
                e(f"buffer_load_dwordx4 v[252:255], v{vDUMP}, s[{sWO}:{sWO+3}], s{sT0} offen")
                vm.issue('pf')
                e(f"s_add_u32 s{sT0}, s{sT0}, 8192")
            e(f"s_and_b32 s{sT1}, s{sW1024}, 0x7ff")
            e(f"s_sub_u32 s{sT0}, s{sT0}, s{sW1024}")
            e(f"s_add_u32 s{sT0}, s{sT0}, s{sT1}")
            e(f"buffer_load_dwordx4 v[252:255], v{vDUMP}, s[{sWO}:{sWO+3}], s{sT0} offen")
            vm.issue('pf')
        def kread(n):
            kvt, ks = divmod(n, 8)
            b = vKB + 4*(n % 8)
            e(f"ds_read_b128 v[{b}:{b+3}], v{vKA+ks} offset:{kvt*8192}")
        for n in range(8): kread(n)
        for n in range(16):
            kvt, ks = divmod(n, 8)
            b = vKB + 4*(n % 8)
            e(f"s_waitcnt lgkmcnt({min(7, 15-n)})")
            c = "0" if ks == 0 else f"v[{vS+16*kvt}:{vS+16*kvt+15}]"
            e(f"v_mfma_f32_32x32x16_bf16 v[{vS+16*kvt}:{vS+16*kvt+15}], v[{b}:{b+3}], v[{vQ+4*ks}:{vQ+4*ks+3}], {c}")
            if n + 8 < 16: kread(n + 8)
        pv = [(k4, dt) for k4 in range(4) for dt in range(4)]
        def vread(n):
            k4, dt = pv[n]
            b = vVB + 4*(n % 8)
            off = k4*16*256
            e(f"ds_read_b64_tr_b16 v[{b}:{b+1}], v{vVA+dt} offset:{off}")
            e(f"ds_read_b64_tr_b16 v[{b+2}:{b+3}], v{vVA+dt} offset:{off + 2048}")
        vm.wait([('it', 4*it+2), ('it', 4*it+3)])
        e("s_barrier")
        for item in (4*it+10, 4*it+11):
            if item < 32: issue_item(item)
        if it == 6: issue_wo(0)
        for n in range(6): vread(n)
        e("s_nop 7")
        e(f"v_max3_f32 v{vT0}, v{vS}, v{vS+1}, v{vS+2}")
        for i in range(3, 31, 2):
            e(f"v_max3_f32 v{vT0}, v{vT0}, v{vS+i}, v{vS+i+1}")
        e(f"v_max_f32 v{vT0}, v{vT0}, v{vS+31}")
        e(f"v_mov_b32 v{vT1}, v{vT0}")
        e("s_nop 1")
        e(f"v_permlane32_swap_b32 v{vT0}, v{vT1}")
        e(f"v_max_f32 v{vT0}, v{vT0}, v{vT1}")
        e(f"v_mul_f32 v{vT0}, s{sC}, v{vT0}")
        e(f"v_max_f32 v{vT0}, v{vT0}, v{vM}")
        e(f"v_sub_f32 v{vT1}, v{vM}, v{vT0}")
        e(f"v_exp_f32 v{vT1}, v{vT1}")
        e(f"v_mov_b32 v{vM}, v{vT0}")
        for i in range(32):
            e(f"v_fma_f32 v{vS+i}, v{vS+i}, s{sC}, -v{vT0}")
        for i in range(32):
            e(f"v_exp_f32 v{vS+i}, v{vS+i}")
        e(f"v_mul_f32 v{vL}, v{vL}, v{vT1}")
        for i in range(64):
            e(f"v_mul_f32 v{vO+i}, v{vO+i}, v{vT1}")
        for i in range(16):
            e(f"v_cvt_pk_bf16_f32 v{vP+i}, v{vS+2*i}, v{vS+2*i+1}")
        e(f"v_add_f32 v{vT2}, v{vS}, v{vS+1}")
        e(f"v_add_f32 v{vT3}, v{vS+2}, v{vS+3}")
        for i in range(4, 32, 2):
            e(f"v_add_f32 v{vT2}, v{vT2}, v{vS+i}")
            e(f"v_add_f32 v{vT3}, v{vT3}, v{vS+i+1}")
        e(f"v_add_f32 v{vL}, v{vL}, v{vT2}")
        e(f"v_add_f32 v{vL}, v{vL}, v{vT3}")
        for n in range(16):
            k4, dt = pv[n]
            b = vVB + 4*(n % 8)
            outstanding_after = 2*min(5, 15-n)
            e(f"s_waitcnt lgkmcnt({outstanding_after})")
            p = vP + 4*k4
            e(f"v_mfma_f32_32x32x16_bf16 v[{vO+16*dt}:{vO+16*dt+15}], v[{b}:{b+3}], v[{p}:{p+3}], v[{vO+16*dt}:{vO+16*dt+15}]")
            if n + 6 < 16: vread(n + 6)
        if it < 7:
            d = lambda x: (entry(x+4) - entry(x)) * ENT
            sel(sDK, d(4*it), d(4*it+1))
            sel(sDV, d(4*it+2), d(4*it+3))
            for r in range(vKA, vKA+8): e(f"v_add_u32 v{r}, s{sDK}, v{r}")
            for r in range(vVA, vVA+4): e(f"v_add_u32 v{r}, s{sDV}, v{r}")
    stamp()
    e("s_nop 7"); e("s_nop 7")
    e(f"v_mov_b32 v{vT1}, v{vL}")
    e("s_nop 1")
    e(f"v_permlane32_swap_b32 v{vL}, v{vT1}")
    e(f"v_add_f32 v{vL}, v{vL}, v{vT1}")
    e("s_barrier")
    e(f"s_lshl_b32 s{sT0}, s{sW}, 13")
    e(f"s_add_u32 s{sT0}, s{sT0}, 73728")
    e(f"v_add_u32 v{vT4}, s{sT0}, v{vDUMP}")
    e(f"s_xor_b32 s{sT0}, s{sT0}, 0")
    e(f"s_xor_b32 s{sT1}, s{sW}, 4")
    e(f"s_lshl_b32 s{sT0}, s{sT1}, 13")
    e(f"s_add_u32 s{sT0}, s{sT0}, 73728")
    e(f"v_add_u32 v{vT5}, s{sT0}, v{vDUMP}")
    e(f"s_lshl_b32 s{sT0}, s{sW}, 9")
    e(f"s_add_u32 s{sT0}, s{sT0}, 139264")
    e(f"v_lshl_add_u32 v{vT2}, v{vLANE}, 2, s{sT0}")
    e(f"s_lshl_b32 s{sT0}, s{sT1}, 9")
    e(f"s_add_u32 s{sT0}, s{sT0}, 139264")
    e(f"v_lshl_add_u32 v{vT3}, v{vLANE}, 2, s{sT0}")
    e(f"ds_write_b32 v{vT2}, v{vM}")
    e(f"ds_write_b32 v{vT2}, v{vL} offset:256")
    e(f"s_cmp_eq_u32 s{sG}, 0")
    e("s_cbranch_scc1 L_mergeA")
    def merge(keep, give):
        for i in range(8):
            e(f"ds_write_b128 v{vT4}, v[{give+4*i}:{give+4*i+3}] offset:{i*1024}")
        e("s_waitcnt lgkmcnt(0)")
        e("s_barrier")
        e(f"ds_read_b32 v{vT0}, v{vT3}")
        e(f"ds_read_b32 v{vT1}, v{vT3} offset:256")
        for i in range(8):
            e(f"ds_read_b128 v[{vS+4*i}:{vS+4*i+3}], v{vT5} offset:{i*1024}")
        e("s_waitcnt lgkmcnt(8)")
        e(f"v_max_f32 v{vT2}, v{vM}, v{vT0}")
        e(f"v_sub_f32 v{vM}, v{vM}, v{vT2}")
        e(f"v_sub_f32 v{vT0}, v{vT0}, v{vT2}")
        e(f"v_exp_f32 v{vM}, v{vM}")
        e(f"v_exp_f32 v{vT0}, v{vT0}")
        e("s_nop 0")
        e(f"v_mul_f32 v{vL}, v{vL}, v{vM}")
        e(f"v_fma_f32 v{vL}, v{vT1}, v{vT0}, v{vL}")
        e(f"v_rcp_f32 v{vL}, v{vL}")
        e("s_nop 0")
        e(f"v_mul_f32 v{vM}, v{vM}, v{vL}")
        e(f"v_mul_f32 v{vT0}, v{vT0}, v{vL}")
        e("s_waitcnt lgkmcnt(0)")
        for i in range(32):
            o = keep + i
            e(f"v_mul_f32 v{o}, v{o}, v{vM}")
            e(f"v_fma_f32 v{o}, v{vS+i}, v{vT0}, v{o}")
        pk = vQ + (0 if keep == vO else 16)
        other = vQ + (16 if keep == vO else 0)
        for i in range(16):
            e(f"v_cvt_pk_bf16_f32 v{pk+i}, v{keep+2*i}, v{keep+2*i+1}")
        for i in range(4):
            e(f"ds_write_b128 v{vT5}, v[{pk+4*i}:{pk+4*i+3}] offset:{i*1024}")
        e("s_waitcnt lgkmcnt(0)")
        e("s_barrier")
        for i in range(4):
            e(f"ds_read_b128 v[{other+4*i}:{other+4*i+3}], v{vT4} offset:{i*1024}")
        e("s_waitcnt lgkmcnt(0)")
    merge(vO+32, vO)
    e("s_branch L_mergeDone")
    lab("L_mergeA")
    merge(vO, vO+32)
    lab("L_mergeDone")
    e("s_barrier")
    issue_wo(2); issue_wo(3)
    stamp()
    for j in range(8):
        vm.wait([('wo', j)])
        e("s_barrier")
        if j >= 1 and j + 3 < 8: issue_wo(j + 3)
        base = WOSLOT[j % 4]
        e(f"v_add_u32 v{vT0}, {base}, v{vWOA}")
        def wread(n):
            b = vVB + 4*(n % 8)
            e(f"ds_read_b64_tr_b16 v[{b}:{b+1}], v{vT0} offset:{n*64}")
            e(f"ds_read_b64_tr_b16 v[{b+2}:{b+3}], v{vT0} offset:{n*64 + 8*1152}")
        for n in range(7): wread(n)
        for n in range(9):
            b = vVB + 4*(n % 8)
            e(f"s_waitcnt lgkmcnt({2*min(6, 8-n)})")
            c = "0" if j == 0 else f"v[{vACC+16*n}:{vACC+16*n+15}]"
            e(f"v_mfma_f32_32x32x16_bf16 v[{vACC+16*n}:{vACC+16*n+15}], v[{b}:{b+3}], v[{vQ+4*j}:{vQ+4*j+3}], {c}")
            if n + 7 < 9: wread(n + 7)
    e("s_nop 7"); e("s_nop 7")
    e("s_barrier")
    stamp()
    e(f"s_lshl_b32 s{sT0}, s{sQH}, 5")
    e(f"v_add_u32 v{vST}, s{sT0}, v{vR16}")
    e(f"s_movk_i32 s{sT1}, 2320")
    e(f"v_mul_lo_u32 v{vST}, v{vST}, s{sT1}")
    e(f"v_lshl_add_u32 v{vST}, v{vH}, 4, v{vST}")
    e(f"s_mul_i32 s{sT0}, s{sG}, 1152")
    e(f"v_add_u32 v{vST}, s{sT0}, v{vST}")
    e(f"s_cmp_eq_u32 s{sHEAD}, 0")
    e("s_cbranch_scc1 L_head0")
    for i in range(36):
        nt, i4 = divmod(i, 4)
        e(f"ds_write_b128 v{vST}, v[{vACC+4*i}:{vACC+4*i+3}] offset:{nt*128 + i4*32}")
    e("s_waitcnt lgkmcnt(0)")
    e("s_barrier")
    e("s_branch L_headdone")
    lab("L_head0")
    e("s_barrier")
    for i0 in range(0, 36, 6):
        for i in range(i0, i0+6):
            bb = vVB + 4*(i - i0)
            nt, i4 = divmod(i, 4)
            e(f"ds_read_b128 v[{bb}:{bb+3}], v{vST} offset:{nt*128 + i4*32}")
        for i in range(i0, i0+6):
            bb = vVB + 4*(i - i0)
            nt, i4 = divmod(i, 4)
            e(f"s_waitcnt lgkmcnt({5 - (i - i0)})")
            for k in range(4):
                e(f"v_add_f32 v{vACC+4*i+k}, v{vACC+4*i+k}, v{bb+k}")
        for i in range(i0, i0+6):
            nt, i4 = divmod(i, 4)
            e(f"v_cvt_pk_bf16_f32 v{vACC+4*i}, v{vACC+4*i}, v{vACC+4*i+1}")
            e(f"v_cvt_pk_bf16_f32 v{vACC+4*i+1}, v{vACC+4*i+2}, v{vACC+4*i+3}")
            e(f"ds_write_b64 v{vST}, v[{vACC+4*i}:{vACC+4*i+1}] offset:{nt*128 + i4*32}")
    e("s_waitcnt lgkmcnt(0)")
    lab("L_headdone")
    e("s_barrier")
    e(f"s_mul_i32 s{sT0}, s{sW}, {8*2320}")
    e(f"v_lshl_add_u32 v{vT0}, v{vLANE}, 5, s{sT0}")
    e(f"s_mul_i32 s{sT1}, s{sW}, {8*1152}")
    for r in range(8):
        bb = vO + 4*r
        e(f"v_add_u32 v{vT1}, {r*2320}, v{vT0}")
        e(f"ds_read2_b64 v[{bb}:{bb+3}], v{vT1} offset0:0 offset1:2")
    e(f"v_lshrrev_b32 v{vT2}, 3, v{vLANE}")
    e(f"v_and_b32 v{vT3}, 7, v{vLANE}")
    e(f"s_movk_i32 s{sT2}, 2320")
    e(f"v_mul_lo_u32 v{vT4}, v{vT2}, s{sT2}")
    e(f"v_lshl_add_u32 v{vT4}, v{vT3}, 5, v{vT4}")
    e(f"v_add_u32 v{vT4}, s{sT0}, v{vT4}")
    e(f"v_add_u32 v{vT4}, 2048, v{vT4}")
    e(f"ds_read2_b64 v[{vS}:{vS+3}], v{vT4} offset0:0 offset1:2")
    e(f"s_movk_i32 s{sT2}, 1152")
    e(f"v_mul_lo_u32 v{vT5}, v{vT2}, s{sT2}")
    e(f"v_lshl_add_u32 v{vT5}, v{vT3}, 4, v{vT5}")
    for r in range(8):
        bb = vO + 4*r
        e(f"s_waitcnt lgkmcnt({8 - r})")
        e(f"s_add_u32 s{sT2}, s{sT1}, {r*1152}")
        e(f"buffer_store_dwordx4 v[{bb}:{bb+3}], v{vDUMP}, s[{sPT}:{sPT+3}], s{sT2} offen {STF}")
    e("s_waitcnt lgkmcnt(0)")
    e(f"buffer_store_dwordx4 v[{vS}:{vS+3}], v{vT5}, s[{sPT}:{sPT+3}], s{sT1} offen offset:1024 {STF}")
    stamp()
    e("s_waitcnt vmcnt(0)")
    stamp()
    stamp_flush()
    lab("L_attn_done")
    e("s_endpgm")

def gen_reduce():
    lab("red_kernel")
    e("s_cmp_ge_u32 s2, 288")
    e("s_cbranch_scc1 L_red_done")
    e("s_load_dwordx2 s[4:5], s[0:1], 56")
    e("s_load_dwordx2 s[6:7], s[0:1], 40")
    e("s_mov_b32 s8, 0xe38e38f")
    e("s_mul_hi_u32 s9, s2, s8")
    e("s_mul_i32 s10, s9, 18")
    e("s_sub_u32 s10, s2, s10")
    e("s_lshl_b32 s10, s10, 8")
    e("v_add_u32 v1, s10, v0")
    e("v_lshlrev_b32 v3, 4, v1")
    e("s_waitcnt lgkmcnt(0)")
    e("s_mul_i32 s11, s9, 1179648")
    e("s_add_u32 s4, s4, s11")
    e("s_addc_u32 s5, s5, 0")
    e("s_mov_b32 s12, s4"); e("s_and_b32 s13, s5, 0xffff"); e("s_mov_b32 s14, 1179648"); e("s_mov_b32 s15, 0x00020000")
    e("s_mul_i32 s11, s9, 73728")
    e("s_add_u32 s6, s6, s11")
    e("s_addc_u32 s7, s7, 0")
    e("s_mov_b32 s16, s6"); e("s_and_b32 s17, s7, 0xffff"); e("s_mov_b32 s18, 73728"); e("s_mov_b32 s19, 0x00020000")
    for h in range(16):
        e(f"s_mov_b32 s20, {h*73728}")
        e(f"buffer_load_dwordx4 v[{16+4*h}:{16+4*h+3}], v3, s[12:15], s20 offen")
    for k in range(8): e(f"v_mov_b32 v{8+k}, 0")
    for h in range(16):
        e(f"s_waitcnt vmcnt({15-h})")
        for k in range(4):
            r = 16+4*h+k
            e(f"v_lshlrev_b32 v2, 16, v{r}")
            e(f"v_and_b32 v{r}, 0xffff0000, v{r}")
            e(f"v_add_f32 v{8+2*k}, v{8+2*k}, v2")
            e(f"v_add_f32 v{9+2*k}, v{9+2*k}, v{r}")
    for k in range(4):
        e(f"v_cvt_pk_bf16_f32 v{4+k}, v{8+2*k}, v{9+2*k}")
    e("buffer_store_dwordx4 v[4:7], v3, s[16:19], 0 offen")
    lab("L_red_done")
    e("s_endpgm")

HDR = """; Fused GQA attention: kernel 1 = Qproj + attention + out-proj partials, kernel 2 = reduce
; @launch kernel=attn_kernel grid=(256,1,1) block=(512,1,1) lds=163840
; @launch kernel=red_kernel grid=(288,1,1) block=(256,1,1) lds=0
.amdgcn_target "amdgcn-amd-amdhsa--gfx950"
.text
"""
def kd(name, nv):
    return f""".amdhsa_kernel {name}
  .amdhsa_next_free_vgpr {nv}
  .amdhsa_next_free_sgpr 100
  .amdhsa_accum_offset {nv}
  .amdhsa_group_segment_fixed_size 0
  .amdhsa_kernarg_size 64
  .amdhsa_user_sgpr_count 2
  .amdhsa_user_sgpr_kernarg_segment_ptr 1
  .amdhsa_system_sgpr_workgroup_id_x 1
.end_amdhsa_kernel
"""
out = [HDR]
for name, g in (("attn_kernel", gen_attn), ("red_kernel", gen_reduce)):
    L.clear()
    out.append(f".globl {name}\n.p2align 8\n.type {name},@function\n")
    g()
    out.append("\n".join(L) + "\n")
out.append('.section .rodata,"a"\n.p2align 6\n')
out.append(kd("attn_kernel", 256))
out.append(".p2align 6\n")
out.append(kd("red_kernel", 80))
open(sys.argv[1] if len(sys.argv) > 1 else "standalone__gqa_block_cached__near_ridge.s", "w").write("".join(out))
```

```python
import sys

L = []
def e(s): L.append("    " + s)
def lab(s): L.append(s + ":")
def cm(s): L.append("    ; " + s)

class VM:
    def __init__(self): self.q = []
    def issue(self, tag): self.q.append(tag)
    def wait(self, tags):
        last = -1
        for i, t in enumerate(self.q):
            if t in tags: last = i
        if last < 0: return
        n = len(self.q) - 1 - last
        assert n <= 63
        e(f"s_waitcnt vmcnt({n})")
        self.q = self.q[last+1:]
vm = VM()
import os
STAMP = os.environ.get("STAMP") == "1"
nst = [0]
def stamp():
    if not STAMP: return
    i = nst[0]; nst[0] += 1
    e("s_memtime s[60:61]")
    e("s_waitcnt lgkmcnt(0)")
    e(f"s_mov_b32 s{64+i}, s60")
def stamp_flush():
    if not STAMP: return
    e("s_cmp_lg_u32 s2, 37")
    e("s_cbranch_scc1 L_nostamp")
    e(f"s_cmp_lg_u32 s{sW}, 0")
    e("s_cbranch_scc1 L_nostamp")
    e("s_load_dwordx2 s[60:61], s[0:1], 48")
    e("s_waitcnt lgkmcnt(0)")
    e("s_mov_b32 s56, s60"); e("s_and_b32 s57, s61, 0xffff"); e("s_mov_b32 s58, 256"); e("s_mov_b32 s59, 0x00020000")
    e("v_mov_b32 v2, 0")
    for i in range(nst[0]):
        e(f"s_sub_u32 s62, s{64+i}, s64")
        e("v_mov_b32 v3, s62")
        e(f"buffer_store_dword v3, v2, s[56:59], 0 offen offset:{4*i}")
    e("s_waitcnt vmcnt(0)")
    lab("L_nostamp")

vLANE = 1
vKA = 2
vVA = 10
vKD = 14
vVD = 15
vM = 16; vL = 17
vT0 = 18; vT1 = 19; vT2 = 20; vT3 = 21; vT4 = 22; vT5 = 23
vQ = 24
vO = 56
vS = 120
vP = 152
vKB = 168
vVB = 200
vX = 56
vWQD = 232
vWQA = 233
vWOD = 236
vWOA = 241
vQW = 242
vDUMP = 243
vST = 244
vH = 245
vR16 = 246
vACC = 56

sK, sV, sWQ, sX, sWO, sPT = 4, 8, 12, 16, 20, 24
sW = 28; sG = 29; sQI = 30; sW1024 = 31
sT0 = 32; sT1 = 33; sT2 = 34; sT3 = 35
sC = 36
sSLOT = 37
sDELTA = 38
sHEAD = 39; sQH = 40

SLOT = 32768
def slot_of(t): return (t + 3) % 5

def srd(s, base_lo, base_hi, nbytes):
    e(f"s_mov_b32 s{s}, s{base_lo}")
    e(f"s_and_b32 s{s+1}, s{base_hi}, 0xffff")
    e(f"s_mov_b32 s{s+2}, {nbytes}")
    e(f"s_mov_b32 s{s+3}, 0x00020000")

def dma(voff, srdreg, soff_expr, m0_const, tag):
    e(f"s_add_u32 m0, s{sW1024}, {m0_const}")
    e(f"s_mov_b32 s{sT3}, {soff_expr}")
    e(f"buffer_load_dwordx4 v{voff}, s[{srdreg}:{srdreg+3}], s{sT3} offen lds")
    vm.issue(tag)

KVF = os.environ.get("KVF", "nt")
STF = os.environ.get("STF", "sc1")
sROT = 41
sDK = 42; sDV = 43
vXA = 247; vXR = 251
ENT = 16384
def entry(item): return (item + 8) % 10
def issue_item(item):
    i, r = divmod(item, 4)
    t = 2*i + (r & 1)
    isV = r >= 2
    sl = entry(item) * ENT
    for k in range(2):
        e(f"s_add_u32 m0, s{sW1024}, {sl + k*8192}")
        e(f"s_add_u32 s{sT3}, s{sROT}, {t*16384 + k*8192}")
        e(f"s_and_b32 s{sT3}, s{sT3}, 0x3ffff")
        vo = vVD if isV else vKD
        sr = sV if isV else sK
        e(f"buffer_load_dwordx4 v{vo}, s[{sr}:{sr+3}], s{sT3} offen {KVF} lds")
        vm.issue(('it', item))

def issue_item_p(item):
    i, r = divmod(item, 4)
    t = 2*i + (r & 1)
    isV = r >= 2
    sl = entry(item) * ENT
    for k in range(4):
        e(f"s_add_u32 m0, s{sW1024}, {sl + k*4096 - 4096}")
        e(f"s_add_u32 s{sT3}, s{sROT}, {t*16384 + k*4096}")
        e(f"s_and_b32 s{sT3}, s{sT3}, 0x3ffff")
        vo = 251 if isV else 250
        sr = sV if isV else sK
        e(f"buffer_load_dwordx4 v{vo}, s[{sr}:{sr+3}], s{sT3} offen lds")
        vm.issue(('it', item))
HC = 20480
def issue_hc_l(j):
    sl = (j % 4) * HC
    for k in range(4):
        dma(vWQD, sWQ, (j*32 + k*8)*8192, sl + k*4096, ('hc', j))
    e(f"s_add_u32 m0, s{sW1024}, {sl + 16384}")
    e(f"s_mov_b32 s{sT3}, {j*64}")
    e(f"buffer_load_dwordx4 v{vXD}, s[{sX}:{sX+3}], s{sT3} offen lds")
    vm.issue(('hc', j))
def issue_hc(j):
    sl = (j % 4) * HC
    for k in range(2):
        dma(vWQD, sWQ, (j*32 + k*16)*8192, sl + k*8192, ('hc', j))
    e(f"s_and_b32 s{sT2}, s{sW1024}, 0xfff")
    e(f"s_add_u32 m0, s{sT2}, {sl + 16384}")
    e(f"s_mov_b32 s{sT3}, {j*64}")
    e(f"buffer_load_dwordx4 v{vXD}, s[{sX}:{sX+3}], s{sT3} offen lds")
    vm.issue(('hc', j))

WOSLOT = [0, 36864, 73728, 110592]
def issue_wo(j):
    sl = WOSLOT[j % 4]
    for k in range(5):
        if k < 4:
            dma(vWOD + k, sWO, j*16*1152, sl + k*8192, ('wo', j))
        else:
            e(f"s_and_b32 s{sT2}, s{sW1024}, 0xfff")
            e(f"s_add_u32 m0, s{sT2}, {sl + 32768}")
            e(f"s_mov_b32 s{sT3}, {j*16*1152}")
            e(f"buffer_load_dwordx4 v{vWOD+4}, s[{sWO}:{sWO+3}], s{sT3} offen lds")
            vm.issue(('wo', j))

def gen_attn():
    lab("attn_kernel")
    e("s_cmp_ge_u32 s2, 256")
    e("s_cbranch_scc1 L_attn_done")
    if os.environ.get("SWAPMAP") == "1":
        e("s_and_b32 s3, s2, 15")
        e("s_lshl_b32 s3, s3, 4")
        e("s_lshr_b32 s2, s2, 4")
        e("s_or_b32 s2, s2, s3")
    e("s_load_dwordx4 s[40:43], s[0:1], 0")
    e("s_load_dwordx4 s[44:47], s[0:1], 16")
    e("s_load_dwordx2 s[48:49], s[0:1], 32")
    e("s_load_dwordx2 s[50:51], s[0:1], 56")
    stamp()
    e(f"v_and_b32 v{vLANE}, 63, v0")
    e(f"v_lshrrev_b32 v{vT0}, 6, v0")
    e("s_nop 0")
    e(f"v_readfirstlane_b32 s{sW}, v{vT0}")
    e("s_nop 3")
    e(f"s_lshr_b32 s{sG}, s{sW}, 2")
    e(f"s_and_b32 s{sQI}, s{sW}, 3")
    e(f"s_lshl_b32 s{sW1024}, s{sW}, 10")
    e(f"s_lshr_b32 s{sHEAD}, s{sQI}, 1")
    e("s_waitcnt lgkmcnt(0)")
    e(f"s_lshl_b32 s{sT0}, s2, 18")
    e(f"s_lshr_b32 s{sT1}, s2, 14")
    e(f"s_add_u32 s42, s42, s{sT0}")
    e(f"s_addc_u32 s43, s43, s{sT1}")
    e(f"s_add_u32 s44, s44, s{sT0}")
    e(f"s_addc_u32 s45, s45, s{sT1}")
    srd(sK, 42, 43, 262144)
    srd(sV, 44, 45, 262144)
    e(f"s_and_b32 s{sT0}, s2, 15")
    e(f"s_lshl_b32 s{sT1}, s{sT0}, 9")
    e(f"s_add_u32 s46, s46, s{sT1}")
    e(f"s_addc_u32 s47, s47, 0")
    srd(sWQ, 46, 47, 0)
    e(f"s_sub_u32 s{sWQ+2}, {576*8192}, s{sT1}")
    e(f"s_lshr_b32 s{sT1}, s2, 4")
    e(f"s_mul_i32 s{sT2}, s{sT1}, 73728")
    e(f"s_add_u32 s40, s40, s{sT2}")
    e(f"s_addc_u32 s41, s41, 0")
    srd(sX, 40, 41, 73728)
    e(f"s_mul_i32 s{sT2}, s{sT0}, {256*1152}")
    e(f"s_add_u32 s48, s48, s{sT2}")
    e(f"s_addc_u32 s49, s49, 0")
    srd(sWO, 48, 49, 256*1152)
    e(f"s_mul_i32 s{sT2}, s2, 73728")
    e(f"s_add_u32 s50, s50, s{sT2}")
    e(f"s_addc_u32 s51, s51, 0")
    srd(sPT, 50, 51, 73728)
    e(f"s_and_b32 s{sQH}, s{sQI}, 1")
    e(f"s_lshr_b32 s{sROT}, s2, 3")
    e(f"s_and_b32 s{sROT}, s{sROT}, 15")
    e(f"s_lshl_b32 s{sROT}, s{sROT}, 14")
    e(f"s_mov_b32 s{sC}, 0x3e0293ee")
    e(f"v_lshrrev_b32 v{vH}, 5, v{vLANE}")
    e(f"v_and_b32 v{vR16}, 31, v{vLANE}")
    e(f"v_lshlrev_b32 v{vDUMP}, 4, v{vLANE}")
    e(f"v_lshrrev_b32 v{vT0}, 3, v{vLANE}")
    e(f"s_lshl_b32 s{sT0}, s{sW}, 3")
    e(f"v_add_u32 v{vT0}, s{sT0}, v{vT0}")
    e(f"v_bfe_u32 v{vT1}, v{vT0}, 1, 3")
    e(f"s_movk_i32 s{sT2}, 1152")
    e(f"v_mul_lo_u32 v{vT0}, v{vT0}, s{sT2}")
    e(f"v_and_b32 v{vT2}, 7, v{vLANE}")
    e(f"v_xor_b32 v{vT1}, v{vT1}, v{vT2}")
    e(f"v_lshl_add_u32 v{vXR}, v{vT1}, 4, v{vT0}")
    e(f"s_lshl_b32 s{sT0}, s{sQH}, 5")
    e(f"v_add_u32 v{vT0}, s{sT0}, v{vR16}")
    e(f"v_bfe_u32 v{vT1}, v{vT0}, 1, 3")
    e(f"v_lshlrev_b32 v{vT0}, 7, v{vT0}")
    e(f"v_add_u32 v{vT0}, 32768, v{vT0}")
    for c4 in range(4):
        e(f"v_or_b32 v{vT2}, {2*c4}, v{vH}")
        e(f"v_xor_b32 v{vT2}, v{vT2}, v{vT1}")
        e(f"v_lshl_add_u32 v{vXA+c4}, v{vT2}, 4, v{vT0}")
    e(f"s_lshl_b32 s{sT0}, s{sW}, 1")
    e(f"v_add_u32 v{vT1}, s{sT0}, v{vH}")
    e(f"v_and_b32 v{vT2}, 3, v{vT1}")
    e(f"v_lshlrev_b32 v{vT2}, 2, v{vT2}")
    e(f"v_xor_b32 v{vT2}, v{vT2}, v{vR16}")
    e(f"v_lshlrev_b32 v{vT2}, 4, v{vT2}")
    e(f"v_lshl_add_u32 v{vWQD}, v{vT1}, 13, v{vT2}")
    e(f"v_lshrrev_b32 v{vT0}, 4, v{vLANE}")
    e(f"v_and_b32 v{vT1}, 15, v{vLANE}")
    e(f"s_lshl_b32 s{sT0}, s{sQI}, 2")
    e(f"v_add_u32 v{vT2}, s{sT0}, v{vT0}")
    e(f"v_xor_b32 v{vT2}, v{vT2}, v{vT1}")
    e(f"v_lshlrev_b32 v{vT2}, 4, v{vT2}")
    e(f"s_lshl_b32 s{sT0}, s{sW}, 2")
    e(f"v_add_u32 v{vT3}, s{sT0}, v{vT0}")
    e(f"v_lshl_add_u32 v{vKD}, v{vT3}, 8, v{vT2}")
    e(f"v_lshlrev_b32 v{vT2}, 2, v{vT0}")
    e(f"v_xor_b32 v{vT2}, v{vT2}, v{vT1}")
    e(f"v_lshlrev_b32 v{vT2}, 4, v{vT2}")
    e(f"v_lshl_add_u32 v{vVD}, v{vT3}, 8, v{vT2}")
    e(f"v_and_b32 v{vT0}, 15, v{vLANE}")
    for ks in range(8):
        e(f"v_or_b32 v{vT1}, {2*ks}, v{vH}")
        e(f"v_xor_b32 v{vT1}, v{vT1}, v{vT0}")
        e(f"v_lshlrev_b32 v{vT1}, 4, v{vT1}")
        e(f"v_lshl_add_u32 v{vKA+ks}, v{vR16}, 8, v{vT1}")
    e(f"v_bfe_u32 v{vT0}, v{vLANE}, 4, 1")
    e(f"v_bfe_u32 v{vT1}, v{vLANE}, 2, 2")
    e(f"v_and_b32 v{vT2}, 3, v{vLANE}")
    e(f"v_lshlrev_b32 v{vT3}, 5, v{vT0}")
    e(f"v_lshl_add_u32 v{vT3}, v{vT2}, 3, v{vT3}")
    e(f"v_lshl_add_u32 v{vT4}, v{vH}, 2, v{vT1}")
    e(f"v_lshl_add_u32 v{vT4}, v{vT4}, 8, v{vT3}")
    for dt in range(4):
        e(f"v_xor_b32 v{vT5}, {dt}, v{vT1}")
        e(f"v_lshl_add_u32 v{vVA+dt}, v{vT5}, 6, v{vT4}")
    e(f"v_lshl_add_u32 v{vT4}, v{vH}, 3, v{vT1}")
    e(f"v_lshl_add_u32 v{vT4}, v{vT4}, 9, v{vT3}")
    e(f"s_lshl_b32 s{sT0}, s{sHEAD}, 2")
    e(f"s_lshl_b32 s{sT1}, s{sG}, 1")
    e(f"s_add_u32 s{sT0}, s{sT0}, s{sT1}")
    for dt in range(2):
        e(f"s_add_u32 s{sT1}, s{sT0}, {dt}")
        e(f"v_xor_b32 v{vT5}, s{sT1}, v{vT1}")
        e(f"v_lshl_add_u32 v{vWQA+dt}, v{vT5}, 6, v{vT4}")
    e(f"s_lshl_b32 s{sT0}, s{sHEAD}, 4")
    e(f"v_lshl_add_u32 v{vT4}, v{vH}, 2, v{vT1}")
    e(f"v_add_u32 v{vT4}, s{sT0}, v{vT4}")
    e(f"s_movk_i32 s{sT1}, 1152")
    e(f"v_mul_lo_u32 v{vT4}, v{vT4}, s{sT1}")
    e(f"s_mul_i32 s{sT0}, s{sG}, 576")
    e(f"v_add3_u32 v{vWOA}, v{vT4}, s{sT0}, v{vT3}")
    for k in range(5):
        if k < 4:
            e(f"s_add_u32 s{sT0}, s{sW1024}, {k*8192}")
        else:
            e(f"s_and_b32 s{sT0}, s{sW1024}, 0xfff")
            e(f"s_add_u32 s{sT0}, s{sT0}, 32768")
        e(f"v_add_u32 v{vT0}, s{sT0}, v{vDUMP}")
        e(f"v_mov_b32 v{vT1}, 18432")
        e(f"v_cmp_ge_u32 vcc, v{vT0}, v{vT1}")
        e(f"v_mov_b32 v{vT2}, 129024")
        e("s_nop 1")
        e(f"v_cndmask_b32 v{vT2}, 0, v{vT2}, vcc")
        e(f"v_add_u32 v{vWOD+k}, v{vT0}, v{vT2}")
    e(f"s_lshl_b32 s{sT0}, s{sQI}, 13")
    e(f"s_add_u32 s{sT0}, s{sT0}, 98304")
    e(f"v_lshlrev_b32 v{vQW}, 8, v{vR16}")
    e(f"v_add_u32 v{vQW}, s{sT0}, v{vQW}")
    e(f"v_lshl_add_u32 v{vQW}, v{vH}, 3, v{vQW}")
    CH = 40960
    def issue_ch(j):
        sl = (j % 3) * CH
        for k in range(4):
            dma(vWQD, sWQ, (j*64 + k*16)*8192, sl + k*8192, ('ch', j))
        dma(vXR, sX, j*128, sl + 32768, ('ch', j))
    issue_ch(0); issue_ch(1)
    issue_item(0); issue_item(1)
    for j in range(9):
        vm.wait([('ch', j)])
        e("s_barrier")
        if j % 3 == 0: stamp()
        if j + 2 < 9: issue_ch(j + 2)
        base = (j % 3) * CH
        e(f"v_add_u32 v{vT0}, {base}, v{vWQA}")
        e(f"v_add_u32 v{vT1}, {base}, v{vWQA+1}")
        xb = vKB
        for ks in range(4):
            e(f"v_add_u32 v{vT2+ks}, {base}, v{vXA+ks}")
        for ks in range(4):
            e(f"ds_read_b128 v[{xb+4*ks}:{xb+4*ks+3}], v{vT2+ks}")
        WA = [vT0, vT1]
        for n in range(8):
            ks, dt = divmod(n, 2)
            bb = vVB + 4*n
            if n == 5: e("s_waitcnt lgkmcnt(6)")
            e(f"ds_read_b64_tr_b16 v[{bb}:{bb+1}], v{WA[dt]} offset:{ks*8192}")
            e(f"ds_read_b64_tr_b16 v[{bb+2}:{bb+3}], v{WA[dt]} offset:{ks*8192 + 2048}")
        for n in range(8):
            ks, dt = divmod(n, 2)
            bb = vVB + 4*n
            e(f"s_waitcnt lgkmcnt({min(15, 2*(7-n))})")
            x = xb + 4*ks
            c = "0" if (j == 0 and ks == 0) else f"v[{vQ+16*dt}:{vQ+16*dt+15}]"
            e(f"v_mfma_f32_32x32x16_bf16 v[{vQ+16*dt}:{vQ+16*dt+15}], v[{bb}:{bb+3}], v[{x}:{x+3}], {c}")
    e("s_barrier")
    stamp()
    for it_ in range(2, 8): issue_item(it_)
    e("s_nop 7"); e("s_nop 7")
    e(f"v_and_b32 v{vT0}, 15, v{vLANE}")
    for dt in range(2):
        for i4 in range(4):
            a = vQ + 16*dt + 4*i4
            e(f"v_cvt_pk_bf16_f32 v{vT2}, v{a}, v{a+1}")
            e(f"v_cvt_pk_bf16_f32 v{vT3}, v{a+2}, v{a+3}")
            e(f"s_lshl_b32 s{sT0}, s{sG}, 3")
            e(f"s_add_u32 s{sT0}, s{sT0}, {dt*4 + i4}")
            e(f"v_xor_b32 v{vT4}, s{sT0}, v{vT0}")
            e(f"v_lshl_add_u32 v{vT4}, v{vT4}, 4, v{vQW}")
            e(f"ds_write_b64 v{vT4}, v[{vT2}:{vT3}]")
    e("s_waitcnt lgkmcnt(0)")
    e("s_barrier")
    e(f"s_lshl_b32 s{sT0}, s{sQI}, 13")
    e(f"s_add_u32 s{sT0}, s{sT0}, 98304")
    for ks in range(8):
        e(f"v_add_u32 v{vT0}, s{sT0}, v{vKA+ks}")
        e(f"ds_read_b128 v[{vQ+4*ks}:{vQ+4*ks+3}], v{vT0}")
    e(f"v_mov_b32 v{vM}, 0xff7fffff")
    e(f"v_mov_b32 v{vL}, 0")
    for i in range(64): e(f"v_mov_b32 v{vO+i}, 0")
    def sel(sreg, va, vb):
        e(f"s_mov_b32 s{sreg}, {vb}")
        e(f"s_cmp_eq_u32 s{sG}, 0")
        e(f"s_cselect_b32 s{sreg}, {va}, s{sreg}")
    sel(sDK, entry(0)*ENT, entry(1)*ENT)
    sel(sDV, entry(2)*ENT, entry(3)*ENT)
    for r in range(vKA, vKA+8): e(f"v_add_u32 v{r}, s{sDK}, v{r}")
    for r in range(vVA, vVA+4): e(f"v_add_u32 v{r}, s{sDV}, v{r}")
    e("s_waitcnt lgkmcnt(0)")
    for it in range(8):
        cm(f"---- iteration {it} ----")
        stamp()
        vm.wait([('it', 4*it), ('it', 4*it+1)])
        e("s_barrier")
        stamp()
        for item in (4*it+8, 4*it+9):
            if item < 32: issue_item(item)
        if it == 7: issue_wo(1)
        if it == 2:
            e(f"s_lshr_b32 s{sT0}, s2, 4")
            e(f"s_mul_i32 s{sT0}, s{sT0}, 18432")
            e(f"s_add_u32 s{sT0}, s{sT0}, s{sW1024}")
            for k in range(2):
                e(f"buffer_load_dwordx4 v[252:255], v{vDUMP}, s[{sWO}:{sWO+3}], s{sT0} offen")
                vm.issue('pf')
                e(f"s_add_u32 s{sT0}, s{sT0}, 8192")
            e(f"s_and_b32 s{sT1}, s{sW1024}, 0x7ff")
            e(f"s_sub_u32 s{sT0}, s{sT0}, s{sW1024}")
            e(f"s_add_u32 s{sT0}, s{sT0}, s{sT1}")
            e(f"buffer_load_dwordx4 v[252:255], v{vDUMP}, s[{sWO}:{sWO+3}], s{sT0} offen")
            vm.issue('pf')
        def kread(n):
            kvt, ks = divmod(n, 8)
            b = vKB + 4*(n % 8)
            e(f"ds_read_b128 v[{b}:{b+3}], v{vKA+ks} offset:{kvt*8192}")
        for n in range(8): kread(n)
        for n in range(16):
            kvt, ks = divmod(n, 8)
            b = vKB + 4*(n % 8)
            e(f"s_waitcnt lgkmcnt({min(7, 15-n)})")
            c = "0" if ks == 0 else f"v[{vS+16*kvt}:{vS+16*kvt+15}]"
            e(f"v_mfma_f32_32x32x16_bf16 v[{vS+16*kvt}:{vS+16*kvt+15}], v[{b}:{b+3}], v[{vQ+4*ks}:{vQ+4*ks+3}], {c}")
            if n + 8 < 16: kread(n + 8)
        pv = [(k4, dt) for k4 in range(4) for dt in range(4)]
        def vread(n):
            k4, dt = pv[n]
            b = vVB + 4*(n % 8)
            off = k4*16*256
            e(f"ds_read_b64_tr_b16 v[{b}:{b+1}], v{vVA+dt} offset:{off}")
            e(f"ds_read_b64_tr_b16 v[{b+2}:{b+3}], v{vVA+dt} offset:{off + 2048}")
        vm.wait([('it', 4*it+2), ('it', 4*it+3)])
        e("s_barrier")
        for item in (4*it+10, 4*it+11):
            if item < 32: issue_item(item)
        if it == 6: issue_wo(0)
        for n in range(6): vread(n)
        e("s_nop 7")
        e(f"v_max3_f32 v{vT0}, v{vS}, v{vS+1}, v{vS+2}")
        for i in range(3, 31, 2):
            e(f"v_max3_f32 v{vT0}, v{vT0}, v{vS+i}, v{vS+i+1}")
        e(f"v_max_f32 v{vT0}, v{vT0}, v{vS+31}")
        e(f"v_mov_b32 v{vT1}, v{vT0}")
        e("s_nop 1")
        e(f"v_permlane32_swap_b32 v{vT0}, v{vT1}")
        e(f"v_max_f32 v{vT0}, v{vT0}, v{vT1}")
        e(f"v_mul_f32 v{vT0}, s{sC}, v{vT0}")
        e(f"v_add_f32 v{vT1}, 0x41000000, v{vM}")
        e(f"v_cmp_gt_f32 vcc, v{vT0}, v{vT1}")
        e("s_nop 4")
        e(f"s_cbranch_vccz L_skip{it}")
        e(f"v_max_f32 v{vT0}, v{vT0}, v{vM}")
        e(f"v_sub_f32 v{vT1}, v{vM}, v{vT0}")
        e(f"v_exp_f32 v{vT1}, v{vT1}")
        e(f"v_mov_b32 v{vM}, v{vT0}")
        e("s_nop 0")
        e(f"v_mul_f32 v{vL}, v{vL}, v{vT1}")
        for i in range(64):
            e(f"v_mul_f32 v{vO+i}, v{vO+i}, v{vT1}")
        lab(f"L_skip{it}")
        for i in range(32):
            e(f"v_fma_f32 v{vS+i}, v{vS+i}, s{sC}, -v{vM}")
        for i in range(32):
            e(f"v_exp_f32 v{vS+i}, v{vS+i}")
        e("s_nop 0")
        for i in range(16):
            e(f"v_cvt_pk_bf16_f32 v{vP+i}, v{vS+2*i}, v{vS+2*i+1}")
        e(f"v_add_f32 v{vT2}, v{vS}, v{vS+1}")
        e(f"v_add_f32 v{vT3}, v{vS+2}, v{vS+3}")
        for i in range(4, 32, 2):
            e(f"v_add_f32 v{vT2}, v{vT2}, v{vS+i}")
            e(f"v_add_f32 v{vT3}, v{vT3}, v{vS+i+1}")
        e(f"v_add_f32 v{vL}, v{vL}, v{vT2}")
        e(f"v_add_f32 v{vL}, v{vL}, v{vT3}")
        for n in range(16):
            k4, dt = pv[n]
            b = vVB + 4*(n % 8)
            outstanding_after = 2*min(5, 15-n)
            e(f"s_waitcnt lgkmcnt({outstanding_after})")
            p = vP + 4*k4
            e(f"v_mfma_f32_32x32x16_bf16 v[{vO+16*dt}:{vO+16*dt+15}], v[{b}:{b+3}], v[{p}:{p+3}], v[{vO+16*dt}:{vO+16*dt+15}]")
            if n + 6 < 16: vread(n + 6)
        if it < 7:
            d = lambda x: (entry(x+4) - entry(x)) * ENT
            sel(sDK, d(4*it), d(4*it+1))
            sel(sDV, d(4*it+2), d(4*it+3))
            for r in range(vKA, vKA+8): e(f"v_add_u32 v{r}, s{sDK}, v{r}")
            for r in range(vVA, vVA+4): e(f"v_add_u32 v{r}, s{sDV}, v{r}")
    stamp()
    e("s_nop 7"); e("s_nop 7")
    e(f"v_mov_b32 v{vT1}, v{vL}")
    e("s_nop 1")
    e(f"v_permlane32_swap_b32 v{vL}, v{vT1}")
    e(f"v_add_f32 v{vL}, v{vL}, v{vT1}")
    e("s_barrier")
    e(f"s_lshl_b32 s{sT0}, s{sW}, 13")
    e(f"s_add_u32 s{sT0}, s{sT0}, 73728")
    e(f"v_add_u32 v{vT4}, s{sT0}, v{vDUMP}")
    e(f"s_xor_b32 s{sT0}, s{sT0}, 0")
    e(f"s_xor_b32 s{sT1}, s{sW}, 4")
    e(f"s_lshl_b32 s{sT0}, s{sT1}, 13")
    e(f"s_add_u32 s{sT0}, s{sT0}, 73728")
    e(f"v_add_u32 v{vT5}, s{sT0}, v{vDUMP}")
    e(f"s_lshl_b32 s{sT0}, s{sW}, 9")
    e(f"s_add_u32 s{sT0}, s{sT0}, 139264")
    e(f"v_lshl_add_u32 v{vT2}, v{vLANE}, 2, s{sT0}")
    e(f"s_lshl_b32 s{sT0}, s{sT1}, 9")
    e(f"s_add_u32 s{sT0}, s{sT0}, 139264")
    e(f"v_lshl_add_u32 v{vT3}, v{vLANE}, 2, s{sT0}")
    e(f"ds_write_b32 v{vT2}, v{vM}")
    e(f"ds_write_b32 v{vT2}, v{vL} offset:256")
    e(f"s_cmp_eq_u32 s{sG}, 0")
    e("s_cbranch_scc1 L_mergeA")
    def merge(keep, give):
        for i in range(8):
            e(f"ds_write_b128 v{vT4}, v[{give+4*i}:{give+4*i+3}] offset:{i*1024}")
        e("s_waitcnt lgkmcnt(0)")
        e("s_barrier")
        e(f"ds_read_b32 v{vT0}, v{vT3}")
        e(f"ds_read_b32 v{vT1}, v{vT3} offset:256")
        for i in range(8):
            e(f"ds_read_b128 v[{vS+4*i}:{vS+4*i+3}], v{vT5} offset:{i*1024}")
        e("s_waitcnt lgkmcnt(8)")
        e(f"v_max_f32 v{vT2}, v{vM}, v{vT0}")
        e(f"v_sub_f32 v{vM}, v{vM}, v{vT2}")
        e(f"v_sub_f32 v{vT0}, v{vT0}, v{vT2}")
        e(f"v_exp_f32 v{vM}, v{vM}")
        e(f"v_exp_f32 v{vT0}, v{vT0}")
        e("s_nop 0")
        e(f"v_mul_f32 v{vL}, v{vL}, v{vM}")
        e(f"v_fma_f32 v{vL}, v{vT1}, v{vT0}, v{vL}")
        e(f"v_rcp_f32 v{vL}, v{vL}")
        e("s_nop 0")
        e(f"v_mul_f32 v{vM}, v{vM}, v{vL}")
        e(f"v_mul_f32 v{vT0}, v{vT0}, v{vL}")
        e("s_waitcnt lgkmcnt(0)")
        for i in range(32):
            o = keep + i
            e(f"v_mul_f32 v{o}, v{o}, v{vM}")
            e(f"v_fma_f32 v{o}, v{vS+i}, v{vT0}, v{o}")
        pk = vQ + (0 if keep == vO else 16)
        other = vQ + (16 if keep == vO else 0)
        for i in range(16):
            e(f"v_cvt_pk_bf16_f32 v{pk+i}, v{keep+2*i}, v{keep+2*i+1}")
        for i in range(4):
            e(f"ds_write_b128 v{vT5}, v[{pk+4*i}:{pk+4*i+3}] offset:{i*1024}")
        e("s_waitcnt lgkmcnt(0)")
        e("s_barrier")
        for i in range(4):
            e(f"ds_read_b128 v[{other+4*i}:{other+4*i+3}], v{vT4} offset:{i*1024}")
        e("s_waitcnt lgkmcnt(0)")
    merge(vO+32, vO)
    e("s_branch L_mergeDone")
    lab("L_mergeA")
    merge(vO, vO+32)
    lab("L_mergeDone")
    e("s_barrier")
    issue_wo(2); issue_wo(3)
    stamp()
    for j in range(8):
        vm.wait([('wo', j)])
        e("s_barrier")
        if j >= 1 and j + 3 < 8: issue_wo(j + 3)
        base = WOSLOT[j % 4]
        e(f"v_add_u32 v{vT0}, {base}, v{vWOA}")
        def wread(n):
            b = vVB + 4*(n % 8)
            e(f"ds_read_b64_tr_b16 v[{b}:{b+1}], v{vT0} offset:{n*64}")
            e(f"ds_read_b64_tr_b16 v[{b+2}:{b+3}], v{vT0} offset:{n*64 + 8*1152}")
        for n in range(7): wread(n)
        for n in range(9):
            b = vVB + 4*(n % 8)
            e(f"s_waitcnt lgkmcnt({2*min(6, 8-n)})")
            c = "0" if j == 0 else f"v[{vACC+16*n}:{vACC+16*n+15}]"
            e(f"v_mfma_f32_32x32x16_bf16 v[{vACC+16*n}:{vACC+16*n+15}], v[{b}:{b+3}], v[{vQ+4*j}:{vQ+4*j+3}], {c}")
            if n + 7 < 9: wread(n + 7)
    e("s_nop 7"); e("s_nop 7")
    e("s_barrier")
    stamp()
    e(f"s_lshl_b32 s{sT0}, s{sQH}, 5")
    e(f"v_add_u32 v{vST}, s{sT0}, v{vR16}")
    e(f"s_movk_i32 s{sT1}, 2320")
    e(f"v_mul_lo_u32 v{vST}, v{vST}, s{sT1}")
    e(f"v_lshl_add_u32 v{vST}, v{vH}, 4, v{vST}")
    e(f"s_mul_i32 s{sT0}, s{sG}, 1152")
    e(f"v_add_u32 v{vST}, s{sT0}, v{vST}")
    e(f"s_cmp_eq_u32 s{sHEAD}, 0")
    e("s_cbranch_scc1 L_head0")
    for i in range(36):
        nt, i4 = divmod(i, 4)
        e(f"ds_write_b128 v{vST}, v[{vACC+4*i}:{vACC+4*i+3}] offset:{nt*128 + i4*32}")
    e("s_waitcnt lgkmcnt(0)")
    e("s_barrier")
    e("s_branch L_headdone")
    lab("L_head0")
    e("s_barrier")
    for i0 in range(0, 36, 6):
        for i in range(i0, i0+6):
            bb = vVB + 4*(i - i0)
            nt, i4 = divmod(i, 4)
            e(f"ds_read_b128 v[{bb}:{bb+3}], v{vST} offset:{nt*128 + i4*32}")
        for i in range(i0, i0+6):
            bb = vVB + 4*(i - i0)
            nt, i4 = divmod(i, 4)
            e(f"s_waitcnt lgkmcnt({5 - (i - i0)})")
            for k in range(4):
                e(f"v_add_f32 v{vACC+4*i+k}, v{vACC+4*i+k}, v{bb+k}")
        for i in range(i0, i0+6):
            nt, i4 = divmod(i, 4)
            e(f"v_cvt_pk_bf16_f32 v{vACC+4*i}, v{vACC+4*i}, v{vACC+4*i+1}")
            e(f"v_cvt_pk_bf16_f32 v{vACC+4*i+1}, v{vACC+4*i+2}, v{vACC+4*i+3}")
            e(f"ds_write_b64 v{vST}, v[{vACC+4*i}:{vACC+4*i+1}] offset:{nt*128 + i4*32}")
    e("s_waitcnt lgkmcnt(0)")
    lab("L_headdone")
    e("s_barrier")
    e(f"s_mul_i32 s{sT0}, s{sW}, {8*2320}")
    e(f"v_lshl_add_u32 v{vT0}, v{vLANE}, 5, s{sT0}")
    e(f"s_mul_i32 s{sT1}, s{sW}, {8*1152}")
    for r in range(8):
        bb = vO + 4*r
        e(f"v_add_u32 v{vT1}, {r*2320}, v{vT0}")
        e(f"ds_read2_b64 v[{bb}:{bb+3}], v{vT1} offset0:0 offset1:2")
    e(f"v_lshrrev_b32 v{vT2}, 3, v{vLANE}")
    e(f"v_and_b32 v{vT3}, 7, v{vLANE}")
    e(f"s_movk_i32 s{sT2}, 2320")
    e(f"v_mul_lo_u32 v{vT4}, v{vT2}, s{sT2}")
    e(f"v_lshl_add_u32 v{vT4}, v{vT3}, 5, v{vT4}")
    e(f"v_add_u32 v{vT4}, s{sT0}, v{vT4}")
    e(f"v_add_u32 v{vT4}, 2048, v{vT4}")
    e(f"ds_read2_b64 v[{vS}:{vS+3}], v{vT4} offset0:0 offset1:2")
    e(f"s_movk_i32 s{sT2}, 1152")
    e(f"v_mul_lo_u32 v{vT5}, v{vT2}, s{sT2}")
    e(f"v_lshl_add_u32 v{vT5}, v{vT3}, 4, v{vT5}")
    for r in range(8):
        bb = vO + 4*r
        e(f"s_waitcnt lgkmcnt({8 - r})")
        e(f"s_add_u32 s{sT2}, s{sT1}, {r*1152}")
        e(f"buffer_store_dwordx4 v[{bb}:{bb+3}], v{vDUMP}, s[{sPT}:{sPT+3}], s{sT2} offen {STF}")
    e("s_waitcnt lgkmcnt(0)")
    e(f"buffer_store_dwordx4 v[{vS}:{vS+3}], v{vT5}, s[{sPT}:{sPT+3}], s{sT1} offen offset:1024 {STF}")
    stamp()
    e("s_waitcnt vmcnt(0)")
    stamp()
    stamp_flush()
    lab("L_attn_done")
    e("s_endpgm")

def gen_reduce():
    lab("red_kernel")
    e("s_cmp_ge_u32 s2, 288")
    e("s_cbranch_scc1 L_red_done")
    e("s_load_dwordx2 s[4:5], s[0:1], 56")
    e("s_load_dwordx2 s[6:7], s[0:1], 40")
    e("s_mov_b32 s8, 0xe38e38f")
    e("s_mul_hi_u32 s9, s2, s8")
    e("s_mul_i32 s10, s9, 18")
    e("s_sub_u32 s10, s2, s10")
    e("s_lshl_b32 s10, s10, 8")
    e("v_add_u32 v1, s10, v0")
    e("v_lshlrev_b32 v3, 4, v1")
    e("s_waitcnt lgkmcnt(0)")
    e("s_mul_i32 s11, s9, 1179648")
    e("s_add_u32 s4, s4, s11")
    e("s_addc_u32 s5, s5, 0")
    e("s_mov_b32 s12, s4"); e("s_and_b32 s13, s5, 0xffff"); e("s_mov_b32 s14, 1179648"); e("s_mov_b32 s15, 0x00020000")
    e("s_mul_i32 s11, s9, 73728")
    e("s_add_u32 s6, s6, s11")
    e("s_addc_u32 s7, s7, 0")
    e("s_mov_b32 s16, s6"); e("s_and_b32 s17, s7, 0xffff"); e("s_mov_b32 s18, 73728"); e("s_mov_b32 s19, 0x00020000")
    for h in range(16):
        e(f"s_mov_b32 s20, {h*73728}")
        e(f"buffer_load_dwordx4 v[{16+4*h}:{16+4*h+3}], v3, s[12:15], s20 offen")
    for k in range(8): e(f"v_mov_b32 v{8+k}, 0")
    for h in range(16):
        e(f"s_waitcnt vmcnt({15-h})")
        for k in range(4):
            r = 16+4*h+k
            e(f"v_lshlrev_b32 v2, 16, v{r}")
            e(f"v_and_b32 v{r}, 0xffff0000, v{r}")
            e(f"v_add_f32 v{8+2*k}, v{8+2*k}, v2")
            e(f"v_add_f32 v{9+2*k}, v{9+2*k}, v{r}")
    for k in range(4):
        e(f"v_cvt_pk_bf16_f32 v{4+k}, v{8+2*k}, v{9+2*k}")
    e("buffer_store_dwordx4 v[4:7], v3, s[16:19], 0 offen")
    lab("L_red_done")
    e("s_endpgm")

HDR = """; Fused GQA attention: kernel 1 = Qproj + attention + out-proj partials, kernel 2 = reduce
; @launch kernel=attn_kernel grid=(256,1,1) block=(512,1,1) lds=163840
; @launch kernel=red_kernel grid=(288,1,1) block=(256,1,1) lds=0
.amdgcn_target "amdgcn-amd-amdhsa--gfx950"
.text
"""
def kd(name, nv):
    return f""".amdhsa_kernel {name}
  .amdhsa_next_free_vgpr {nv}
  .amdhsa_next_free_sgpr 100
  .amdhsa_accum_offset {nv}
  .amdhsa_group_segment_fixed_size 0
  .amdhsa_kernarg_size 64
  .amdhsa_user_sgpr_count 2
  .amdhsa_user_sgpr_kernarg_segment_ptr 1
  .amdhsa_system_sgpr_workgroup_id_x 1
.end_amdhsa_kernel
"""
out = [HDR]
for name, g in (("attn_kernel", gen_attn), ("red_kernel", gen_reduce)):
    L.clear()
    out.append(f".globl {name}\n.p2align 8\n.type {name},@function\n")
    g()
    out.append("\n".join(L) + "\n")
out.append('.section .rodata,"a"\n.p2align 6\n')
out.append(kd("attn_kernel", 256))
out.append(".p2align 6\n")
out.append(kd("red_kernel", 80))
open(sys.argv[1] if len(sys.argv) > 1 else "standalone__gqa_block_cached__near_ridge.s", "w").write("".join(out))
```
